```python
import torch

def _softmax(x, axis=-1):
    return torch.softmax(x, dim=axis)
def _gelu(x):
    return torch.nn.functional.gelu(x, approximate="tanh")
def _silu(x):
    return torch.nn.functional.silu(x)
def _sigmoid(x):
    return torch.sigmoid(x)
def _layernorm(x, axis=-1, eps=1e-5):
    m = x.mean(dim=axis, keepdim=True)
    v = x.var(dim=axis, keepdim=True, unbiased=False)
    return (x - m) / torch.sqrt(v + eps)
def _scatter_add(tgt, idx, src, axis=0):
    return tgt.clone().index_add_(axis, idx, src)
def _segment_sum(src, seg, n):
    out = torch.zeros((n,) + src.shape[1:], dtype=src.dtype)
    return out.index_add_(0, seg, src)
def _pad(x, pw):
    flat = tuple(v for pair in reversed(pw) for v in pair)
    return torch.nn.functional.pad(x, flat)

kernel_name = 'recurrent_scan__mha_block__glu_gated_swiglu__prompt'

def setup_inputs():

    _w = (lambda a: (lambda t: t.to(torch.bfloat16) if t.is_floating_point() else t)(torch.as_tensor(a)))
    def _A_setup():
        B, S, D, H = 1, 2048, 640, 32
        return {
            "x": _w((lambda *s: torch.randn(*s, dtype=torch.bfloat16) * 0.05)(B, S, D)),
            "wqkv": _w((lambda *s: torch.randn(*s, dtype=torch.bfloat16) * 0.2)(D, 3 * D)),
            "wo": _w((lambda *s: torch.randn(*s, dtype=torch.bfloat16) * 0.2)(D, D)),
        }
    _A_in = _A_setup()

    def _B_setup():
        B, S, D, F = 1, 2048, 640, 1536
        return {
            "x": _w((lambda *s: torch.randn(*s, dtype=torch.bfloat16) * 0.05)(B, S, D)),
            "w1": _w((lambda *s: torch.randn(*s, dtype=torch.bfloat16) * 0.1)(D, F) * (2.0 / D) ** 0.5),
            "w3": _w((lambda *s: torch.randn(*s, dtype=torch.bfloat16) * 0.1)(D, F) * (2.0 / D) ** 0.5),
            "w2": _w((lambda *s: torch.randn(*s, dtype=torch.bfloat16) * 0.1)(F, D) * (2.0 / F) ** 0.5),
        }
    _B_in = _B_setup()

    return {
        "A_x": _A_in["x"],
        "A_wqkv": _A_in["wqkv"],
        "A_wo": _A_in["wo"],
        "B_x": _B_in["x"],
        "B_w1": _B_in["w1"],
        "B_w3": _B_in["w3"],
        "B_w2": _B_in["w2"],
    }

def reference(A_x, A_wqkv, A_wo, B_x, B_w1, B_w3, B_w2):
    def _A_ref(x, wqkv, wo):
        B, S, D = x.shape
        H = 32
        Dh = D // H
        qkv = (lambda x, *d: x.permute(*d))((x @ wqkv).reshape(B, S, 3, H, Dh), 2, 0, 3, 1, 4)
        q, k, v = qkv[0], qkv[1], qkv[2]
        scores = torch.einsum("bhqd,bhkd->bhqk", q, k) * (Dh ** -0.5)
        p = _softmax(scores, axis=-1)
        o = torch.einsum("bhqk,bhkd->bhqd", p, v)
        return (lambda x, *d: x.permute(*d))(o, 0, 2, 1, 3).reshape(B, S, D) @ wo

    def _B_ref(x, w1, w3, w2):
        gate = torch.einsum("bsd,df->bsf", x, w1)
        up = torch.einsum("bsd,df->bsf", x, w3)
        h = _silu(gate) * up
        out = torch.einsum("bsf,fd->bsd", h, w2)
        return out

    x = A_x
    xn = _layernorm(x, axis=-1)
    s = _A_ref(xn, A_wqkv, A_wo)
    g = _silu(_B_ref(xn, B_w1, B_w3, B_w2))
    return x + s * g
```

```python
class Asm:
    def __init__(self):
        self.lines = []
        self.uid = 0
    def __call__(self, s=""):
        for l in s.split("\n"):
            self.lines.append("    " + l.strip() if l.strip() and not l.strip().endswith(":") else l.strip())
    def label(self, name):
        self.lines.append(name + ":")
    def raw(self, s):
        self.lines.append(s)
    def newlabel(self, p="L"):
        self.uid += 1
        return f"{p}_{self.uid}"
    def text(self):
        return "\n".join(self.lines) + "\n"

def vr(a, n=1):
    return f"v{a}" if n == 1 else f"v[{a}:{a+n-1}]"
def sr(a, n=1):
    return f"s{a}" if n == 1 else f"s[{a}:{a+n-1}]"

def kernel_begin(A, name):
    A.raw(f".globl {name}")
    A.raw(".p2align 8")
    A.raw(f".type {name},@function")
    A.raw(f"{name}:")

def kernel_desc(name, nvgpr, nsgpr=102):
    acc = (nvgpr + 3) // 4 * 4
    return f""".p2align 6
.amdhsa_kernel {name}
  .amdhsa_next_free_vgpr {nvgpr}
  .amdhsa_next_free_sgpr {nsgpr}
  .amdhsa_accum_offset {acc}
  .amdhsa_group_segment_fixed_size 0
  .amdhsa_kernarg_size 80
  .amdhsa_user_sgpr_count 2
  .amdhsa_user_sgpr_kernarg_segment_ptr 1
  .amdhsa_system_sgpr_workgroup_id_x 1
.end_amdhsa_kernel
"""

def srd(A, d, lo, hi, nbytes):
    A(f"s_mov_b32 s{d}, s{lo}")
    A(f"s_and_b32 s{d+1}, s{hi}, 0xffff")
    A(f"s_mov_b32 s{d+2}, {nbytes}")
    A(f"s_mov_b32 s{d+3}, 0x00020000")

HEADER = """; Kernarg layout for this problem (80 bytes, ptrs only, base s[0:1]):
"""

XN_OFF = 0
XN_SZ  = 64*40*1024
QF_OFF = XN_OFF + XN_SZ
QK_HS  = 64*1536
QK_SZ  = 32*QK_HS
KF_OFF = QF_OFF + QK_SZ
VF_OFF = KF_OFF + QK_SZ
V_GS   = 672
V_HS   = 128*V_GS
VF_SZ  = 32*V_HS
H_OFF  = VF_OFF + VF_SZ
H_SZ   = 64*96*1024
OF_OFF = H_OFF + H_SZ
OF_SZ  = XN_SZ
G_OFF  = OF_OFF + OF_SZ
G_SZ   = 2048*640*4
WS_USED = G_OFF + G_SZ

import os
PROF = int(os.environ.get("PROF", "0"))
PROF_OFF = 64 << 20
class Prof:
    def __init__(self, A, kidx, base=80):
        self.A, self.k, self.b, self.n = A, kidx, base, 0
    def stamp(self):
        if not PROF: return
        A, b = self.A, self.b
        assert self.n < 6
        if self.n == 0:
            A(f"s_memrealtime s[{b+14}:{b+15}]")
        A(f"s_memtime s[{b+2*self.n}:{b+2*self.n+1}]")
        A("s_waitcnt lgkmcnt(0)")
        self.n += 1
    def flush(self, wave_sreg, vt=0, vd=2):
        if not PROF: return
        A, b = self.A, self.b
        A(f"s_memrealtime s[{b+12}:{b+13}]")
        A("s_waitcnt vmcnt(0) lgkmcnt(0)")
        A(f"s_load_dwordx2 s[{b+16}:{b+17}], s[0:1], 72")
        A("s_waitcnt lgkmcnt(0)")
        A(f"s_add_u32 s{b+16}, s{b+16}, {PROF_OFF + self.k*1024*8*32}")
        A(f"s_addc_u32 s{b+17}, s{b+17}, 0")
        A(f"s_and_b32 s{b+17}, s{b+17}, 0xffff")
        A(f"s_mov_b32 s{b+18}, {1024*8*32}")
        A(f"s_mov_b32 s{b+19}, 0x00020000")
        A(f"v_mov_b32 v{vd}, s{b+14}")
        A(f"v_mov_b32 v{vd+1}, s{b+12}")
        for i in range(1, 6):
            if i < self.n:
                A(f"s_sub_u32 s{b+2*i}, s{b+2*i}, s{b}")
                A(f"v_mov_b32 v{vd+1+i}, s{b+2*i}")
            else:
                A(f"v_mov_b32 v{vd+1+i}, 0")
        A(f"v_mov_b32 v{vd+7}, 1")
        A(f"s_lshl_b32 s{b}, s2, 3")
        A(f"s_add_u32 s{b}, s{b}, s{wave_sreg}")
        A(f"s_lshl_b32 s{b}, s{b}, 5")
        A(f"v_mov_b32 v{vt}, 0")
        A(f"s_mov_b64 exec, 1")
        A(f"buffer_store_dwordx4 v[{vd}:{vd+3}], v{vt}, s[{b+16}:{b+19}], s{b} offen")
        A(f"buffer_store_dwordx4 v[{vd+4}:{vd+7}], v{vt}, s[{b+16}:{b+19}], s{b} offen offset:16")
        A("s_waitcnt vmcnt(0)")
```

```python
import os
from asmlib import Asm, srd, kernel_begin, kernel_desc, HEADER

NAME = "recurrent_scan__mha_block__glu_gated_swiglu__prompt_kernel"
STAT_OFF = 0
CS_OFF   = 16384
QK_OFF   = 131072
QK_OS    = 32768
VT_OFF   = QK_OFF + 160*QK_OS
VT_GS    = 20480
H_OFF    = VT_OFF + 128*VT_GS
H_TS     = 49152
O_OFF    = H_OFF + 128*H_TS
O_TS     = 80*256
WI_OFF   = O_OFF + 128*O_TS
WI_NS    = 68*5120
WS_USED  = WI_OFF + 8*WI_NS
XR   = 0
WR   = 65536
WSL  = 12352
GREG = 6176
MF   = 139648
CSF  = MF + 2048
SYNC = CSF + 5120
RS   = SYNC + 128
NL   = RS + 512
IR   = NL + 512
SCR  = IR + 512
LDS_TOTAL = 163840
assert SCR + 3*5120 == LDS_TOTAL

PROF = int(os.environ.get("PROF", "0"))
PROF_OFF = 64 << 20
class Prof:
    def __init__(self, A):
        self.A, self.n = A, 0
    def stamp(self, idx=None):
        if not PROF: return
        A = self.A
        if idx is None: idx = self.n
        assert idx < 9
        if idx == 0:
            A("s_memrealtime s[98:99]")
        A(f"s_memtime s[{80+2*idx}:{81+2*idx}]")
        A("s_waitcnt lgkmcnt(0)")
        self.n = idx + 1
    def flush(self, n, vd=2, vt=1):
        if not PROF: return
        A = self.A
        A("s_memrealtime s[64:65]")
        A("s_waitcnt vmcnt(0) lgkmcnt(0)")
        A(f"s_add_u32 s68, s22, {PROF_OFF}")
        A("s_addc_u32 s69, s23, 0")
        A("s_and_b32 s69, s69, 0xffff")
        A(f"s_mov_b32 s70, {256*16*64}")
        A("s_mov_b32 s71, 0x00020000")
        A(f"v_mov_b32 v{vd}, s98")
        A(f"v_mov_b32 v{vd+1}, s64")
        for i in range(1, 14):
            if i < n:
                A(f"s_sub_u32 s66, s{80+2*i}, s80")
                A(f"v_mov_b32 v{vd+1+i}, s66")
            else:
                A(f"v_mov_b32 v{vd+1+i}, 0")
        A(f"v_mov_b32 v{vd+15}, 1")
        A("s_lshl_b32 s66, s2, 4")
        A("s_add_u32 s66, s66, s24")
        A("s_lshl_b32 s66, s66, 6")
        A(f"v_mov_b32 v{vt}, 0")
        A("s_mov_b64 exec, 1")
        for i in range(4):
            A(f"buffer_store_dwordx4 v[{vd+4*i}:{vd+4*i+3}], v{vt}, s[68:71], s66 offen offset:{16*i}")
        A("s_waitcnt vmcnt(0)")
        A("s_mov_b64 exec, -1")

TR_OFF = PROF_OFF + (1 << 20)
TRV = 167
TRACE = int(os.environ.get("TRACE", "0"))
def trace_init(A):
    if TRACE: A(f"v_mov_b32 v{TRV}, 0")
def trace(A, idx, nowait=False):
    if not TRACE: return
    A("s_memtime s[100:101]")
    A("s_waitcnt lgkmcnt(0)")
    A("s_sub_u32 s100, s100, s80")
    A(f"v_writelane_b32 v{TRV}, s100, {idx}")
def trace_flush(A, vt=1):
    if not TRACE: return
    A(f"s_add_u32 s68, s22, {TR_OFF}")
    A("s_addc_u32 s69, s23, 0")
    A("s_and_b32 s69, s69, 0xffff")
    A(f"s_mov_b32 s70, {256*16*256}")
    A("s_mov_b32 s71, 0x00020000")
    A("s_lshl_b32 s66, s2, 4")
    A("s_add_u32 s66, s66, s24")
    A("s_lshl_b32 s66, s66, 8")
    A(f"v_lshlrev_b32 v{vt}, 2, v0")
    A(f"buffer_store_dword v{TRV}, v{vt}, s[68:71], s66 offen")
    A("s_waitcnt vmcnt(0)")

SPIN_MAX = 60000
def poll_flags(A, lbl, vtmp, vaddr, mask, scnt="s60"):
    A(f"s_mov_b32 {scnt}, 0")
    A.label(lbl)
    A(f"buffer_load_dword v{vtmp}, v{vaddr}, s[36:39], 0 offen sc1")
    A("s_waitcnt vmcnt(0)")
    if isinstance(mask, tuple):
        A(f"v_and_b32 v{vtmp}, v{mask[1]}, v{vtmp}")
        A(f"v_cmp_ne_u32 vcc, v{mask[1]}, v{vtmp}")
    else:
        A(f"v_and_b32 v{vtmp}, {hex(mask)}, v{vtmp}")
        A(f"v_cmp_ne_u32 vcc, {hex(mask)}, v{vtmp}")
    A(f"s_cbranch_vccz {lbl}_ok")
    A(f"s_add_u32 {scnt}, {scnt}, 1")
    A(f"s_cmp_lt_u32 {scnt}, {SPIN_MAX}")
    A(f"s_cbranch_scc0 {lbl}_ok")
    A("s_sleep 2")
    A(f"s_branch {lbl}")
    A.label(lbl + "_ok")

def signal(A, val, vtmp0, vtmp1):
    A(f"v_mov_b32 v{vtmp0}, {val}")
    A(f"v_mov_b32 v{vtmp1}, s2")
    A("s_mov_b64 exec, 1")
    A(f"buffer_store_byte v{vtmp0}, v{vtmp1}, s[36:39], 0 offen sc1")
    A("s_mov_b64 exec, -1")
```

```python
from mlib import *
KA = int(os.environ.get('KA', '32'))
SC = ''
MRG_BASE = 65536; MRG_SZ = 3328
PART = 102400
O0, O1, SX, SY, PP = 16, 32, 48, 64, 8
Q = [(80, 84), (88, 92)]
RING = 96
def slot(i): return RING + 16*(i % 4)
def mfma(d, a, b, c): return f"v_mfma_f32_32x32x16_bf16 v[{d}:{d+15}], v[{a}:{a+3}], v[{b}:{b+3}], " + (c if isinstance(c, str) else f"v[{c}:{c+15}]")

def b_tail_p1(A, P, role):
    A("s_waitcnt vmcnt(0)")
    lds_count(A, f"L_{role}_NOSIGH", S_HCNT, 7, 2, 3, 4)
    A(f"v_mov_b32 v8, {SYNC + S_QSIG}")
    lds_spin_ge(A, f"L_{role}_WQSIG", 9, 8, 1)
    signal(A, 3, 2, 3)
    A("s_waitcnt vmcnt(0)")
    lds_set(A, S_HSIG, 1, 2, 3)
    A.label(f"L_{role}_NOSIGH")

def tile_loads(A, s, adv=True):
    R = slot(s)
    A(f"buffer_load_dwordx4 v[{R}:{R+3}], v2, s[32:35], s44 offen")
    A(f"buffer_load_dwordx2 v[{R+4}:{R+5}], v3, s[32:35], s44 offen")
    A("s_mov_b64 exec, s[46:47]")
    A(f"buffer_load_dwordx4 v[{R+8}:{R+11}], v4, s[32:35], s45 offen")
    A(f"buffer_load_dwordx4 v[{R+12}:{R+15}], v5, s[32:35], s45 offen")
    A("s_mov_b64 exec, -1")
    if adv:
        A("s_add_u32 s44, s44, 512")
        A(f"s_add_u32 s45, s45, {2*VT_GS}")

def attention(A, P):
    A("s_lshr_b32 s49, s24, 2")
    A(f"s_mul_i32 s42, s49, {KA}")
    A(f"s_cmp_eq_u32 s49, 0\ns_cselect_b32 s43, {KA//4}, {(64-KA)//4}")
    P.stamp(1)
    A(f"""s_and_b32 s52, s2, 7
s_lshl_b32 s52, s52, 2
s_bfe_u32 s53, s2, 0x20003
s_add_u32 s40, s52, s53
s_lshr_b32 s41, s2, 5
s_lshr_b32 s52, s40, 1
s_mul_i32 s52, s52, 5
s_and_b32 s53, s40, 1
s_mul_i32 s54, s53, 3
s_add_u32 s54, s54, s52
s_add_u32 s55, s52, 2
s_mul_i32 s54, s54, {QK_OS}
s_mul_i32 s55, s55, {QK_OS}
s_lshl_b32 s56, s53, 3
s_add_u32 s55, s55, s56
s_add_u32 s54, s54, {QK_OFF}
s_add_u32 s55, s55, {QK_OFF}
v_and_b32 v10, 31, v0
v_lshrrev_b32 v11, 5, v0
v_lshlrev_b32 v12, 4, v10
v_lshl_add_u32 v13, v11, 15, v12
v_add_u32 v13, s54, v13
v_add_u32 v14, s55, v12
v_cmp_eq_u32 vcc, 0, v11
v_mov_b32 v15, 0x7ff00000
v_cndmask_b32 v14, v15, v14, vcc
v_add_u32 v2, {80*QK_OS}, v13
v_add_u32 v3, {80*QK_OS}, v14
v_cndmask_b32 v3, v15, v3, vcc
s_lshl_b32 s56, s41, 8
s_lshl_b32 s57, s28, 6
s_add_u32 s56, s56, s57
s_lshl_b32 s57, s49, 5
s_add_u32 s58, s56, s57
s_xor_b32 s57, s57, 32
s_add_u32 s59, s56, s57
s_lshl_b32 s56, s58, 4
s_lshl_b32 s57, s59, 4""")
    A("s_mov_b32 s51, s58")
    A(f"""buffer_load_dwordx4 v[{Q[0][0]}:{Q[0][0]+3}], v13, s[32:35], s56 offen
buffer_load_dwordx2 v[{Q[0][1]}:{Q[0][1]+1}], v14, s[32:35], s56 offen
buffer_load_dwordx4 v[{Q[1][0]}:{Q[1][0]+3}], v13, s[32:35], s57 offen
buffer_load_dwordx2 v[{Q[1][1]}:{Q[1][1]+1}], v14, s[32:35], s57 offen""")
    A(f"""s_mul_i32 s52, s40, 320
s_add_u32 s52, s52, {VT_OFF}
v_mul_u32_u24 v4, 10240, v11
v_add_u32 v4, v4, v12
v_add_u32 v4, s52, v4
v_add_u32 v5, {VT_GS}, v4
s_mov_b32 s46, 0x000fffff
s_mov_b32 s47, 0x000fffff
s_mov_b32 s48, 0""")
    A(f"""v_mov_b32 v12, 0x3f803f80
v_cndmask_b32 v13, 0, v12, vcc
v_lshrrev_b32 v14, 16, v13
v_cmp_eq_u32 vcc, 20, v10
v_cndmask_b32 v12, 0, v12, vcc""")
    for s in range(4):
        R = slot(s)
        A(f"v_mov_b32 v{R+6}, v13\nv_mov_b32 v{R+7}, v14")
        for r in range(8, 16): A(f"v_mov_b32 v{R+r}, v12")
    A("s_barrier")
    A.label("L_ATT_START")
    A(f"""s_lshl_b32 s44, s42, 9
s_mul_i32 s45, s42, {2*VT_GS}""")
    for s in range(3): tile_loads(A, s)
    for j in range(2):
        A(f"v_mov_b32 v{Q[j][1]+2}, 0\nv_mov_b32 v{Q[j][1]+3}, 0")
    A("s_cmp_eq_u32 s48, 0\ns_cbranch_scc0 L_ATT_HAVEM")
    A("s_waitcnt vmcnt(4)")
    def smax(j, first, dst, srcs):
        regs = [b + r for b in srcs for r in range(16)]
        if first:
            A(f"v_max3_f32 v{dst}, v{regs[0]}, v{regs[1]}, v{regs[2]}"); regs = regs[3:]
        while regs:
            if len(regs) >= 2:
                A(f"v_max3_f32 v{dst}, v{dst}, v{regs[0]}, v{regs[1]}"); regs = regs[2:]
            else:
                A(f"v_max_f32 v{dst}, v{dst}, v{regs[0]}"); regs = regs[1:]
    def xhalf_max(r):
        A(f"""v_mov_b32 v160, v{r}
s_nop 1
v_permlane32_swap_b32 v{r}, v160
s_nop 1
v_max_f32 v{r}, v{r}, v160""")
    for j in range(2):
        for t, B in ((0, SX), (1, SY)):
            A(mfma(B, slot(t), Q[j][0], "0"))
            A(mfma(B, slot(t)+4, Q[j][1], B))
        A("s_nop 7\ns_nop 7")
        smax(j, True, 6+j, [SX, SY])
    for j in range(2):
        xhalf_max(6+j)
        A(f"v_add_f32 v{6+j}, 0x42c00000, v{6+j}")
    A.label("L_ATT_HAVEM")
    A("v_cmp_gt_u32 vcc, 32, v0")
    for j in range(2):
        m = 6 + j; q2 = Q[j][1]
        A(f"""v_sub_f32 v160, 0, v{m}
v_cvt_pk_bf16_f32 v161, v160, v160
v_and_b32 v161, 0xffff0000, v161
v_sub_f32 v162, v160, v161
v_cvt_pk_bf16_f32 v163, v162, v162
v_and_b32 v163, 0xffff0000, v163
v_sub_f32 v164, v162, v163
v_cvt_pk_bf16_f32 v165, v164, v164
v_and_b32 v165, 0xffff0000, v165
v_add_f32 v166, v163, v165
v_add_f32 v166, v161, v166
v_sub_f32 v{m}, 0, v166
v_lshrrev_b32 v161, 16, v161
v_or_b32 v161, v161, v163
v_lshrrev_b32 v165, 16, v165
v_cndmask_b32 v{q2+2}, 0, v161, vcc
v_cndmask_b32 v{q2+3}, 0, v165, vcc""")
    for r in range(O0, O0 + 32): A(f"v_mov_b32 v{r}, 0")
    for r in range(PP, PP + 8): A(f"v_mov_b32 v{r}, 0")
    A("s_waitcnt vmcnt(4)")
    A(mfma(SX, slot(0), Q[0][0], "0"))
    A(mfma(SX, slot(0)+4, Q[0][1], SX))
    A("s_mov_b32 s50, 0\ns_nop 7\ns_nop 3")
    P.stamp(2)
    A.label("L_ATT_LOOP")
    for t in range(4):
        for j in range(2):
            X, Y = (SX, SY) if j == 0 else (SY, SX)
            cur = slot(t); nxt = slot(t + 1) if j == 1 else cur
            qn = Q[1 - j]
            Ocur = (O0, O1)[j]; Oprev = (O0, O1)[1 - j]
            vprev = slot(t - 1) if j == 0 else cur
            if j == 1: A("s_waitcnt vmcnt(8)")
            A(mfma(Y, nxt, qn[0], "0"))
            for e in range(0, 6): A(f"v_exp_f32 v{X+e}, v{X+e}")
            A(mfma(Oprev, vprev + 12, PP + 4, Oprev))
            for e in range(6, 8): A(f"v_exp_f32 v{X+e}, v{X+e}")
            if j == 0: tile_loads(A, t + 3)
            for e in range(4): A(f"v_cvt_pk_bf16_f32 v{PP+e}, v{X+2*e}, v{X+2*e+1}")
            A(mfma(Y, nxt + 4, qn[1], Y))
            for e in range(8, 14): A(f"v_exp_f32 v{X+e}, v{X+e}")
            A(mfma(Ocur, cur + 8, PP, Ocur))
            for e in range(14, 16): A(f"v_exp_f32 v{X+e}, v{X+e}")
            for e in range(4, 8): A(f"v_cvt_pk_bf16_f32 v{PP+e}, v{X+2*e}, v{X+2*e+1}")
    A("""s_add_u32 s50, s50, 1
s_cmp_lt_u32 s50, s43
s_cbranch_scc1 L_ATT_LOOP
s_nop 1""")
    A(mfma(O1, slot(3) + 12, PP + 4, O1))
    A("s_nop 7\ns_nop 7")
    P.stamp(3)
    A("s_mov_b64 s[52:53], 0")
    A("v_mov_b32 v161, 0x207")
    for j, O in enumerate((O0, O1)):
        for r in range(12):
            A(f"v_cmp_class_f32 vcc, v{O+r}, v161")
            A("s_or_b64 s[52:53], s[52:53], vcc")
        A(f"""v_mov_b32 v160, v{O+8}
v_mov_b32 v{162+j}, v{O+8}
s_nop 1
v_permlane32_swap_b32 v160, v{162+j}
s_nop 1
v_cmp_lt_f32 vcc, 0x71800000, v{162+j}
s_or_b64 s[52:53], s[52:53], vcc""")
    A("""s_cmp_eq_u64 s[52:53], 0
s_cbranch_scc1 L_ATT_OK
s_cmp_eq_u32 s48, 0
s_cbranch_scc0 L_ATT_OK""")
    A("s_waitcnt vmcnt(0)")
    A(f"s_mov_b32 s48, 1\ns_lshl_b32 s44, s42, 9\ns_lshl_b32 s50, s43, 2")
    for j in range(2):
        A(f"v_mov_b32 v{Q[j][1]+2}, 0\nv_mov_b32 v{Q[j][1]+3}, 0\nv_mov_b32 v{6+j}, 0xff800000")
    A.label("L_ATT_MAXL")
    R = slot(0)
    A(f"buffer_load_dwordx4 v[{R}:{R+3}], v2, s[32:35], s44 offen")
    A(f"buffer_load_dwordx2 v[{R+4}:{R+5}], v3, s[32:35], s44 offen")
    A("s_waitcnt vmcnt(0)")
    for j, B in ((0, SX), (1, SY)):
        A(mfma(B, R, Q[j][0], "0"))
        A(mfma(B, R+4, Q[j][1], B))
    A("s_nop 7\ns_nop 7")
    smax(0, False, 6, [SX]); smax(1, False, 7, [SY])
    A("""s_add_u32 s44, s44, 512
s_sub_u32 s50, s50, 1
s_cmp_eq_u32 s50, 0
s_cbranch_scc0 L_ATT_MAXL""")
    for j in range(2): xhalf_max(6+j)
    A("s_branch L_ATT_START")
    A.label("L_ATT_OK")
    for j, O in enumerate((O0, O1)):
        A(f"v_rcp_f32 v160, v{162+j}\nv_log_f32 v161, v{162+j}\ns_nop 0")
        for r in range(12): A(f"v_mul_f32 v{O+r}, v160, v{O+r}")
        A(f"v_add_f32 v{6+j}, v161, v{6+j}")
    A(f"""s_lshl_b32 s52, s49, 2
s_add_u32 s52, s52, s28
s_mul_i32 s53, s52, {MRG_SZ}
s_add_u32 s53, s53, {MRG_BASE}
s_xor_b32 s52, s52, 4
s_mul_i32 s54, s52, {MRG_SZ}
s_add_u32 s54, s54, {MRG_BASE}
v_lshlrev_b32 v10, 4, v0
v_lshlrev_b32 v11, 2, v0
v_add_u32 v12, s53, v10
v_add_u32 v13, s53, v11""")
    for i in range(3): A(f"ds_write_b128 v12, v[{O1+4*i}:{O1+4*i+3}] offset:{1024*i}")
    A("ds_write_b32 v13, v7 offset:3072")
    A("s_waitcnt lgkmcnt(0)")
    A(f"""s_lshl_b32 s52, s28, 2
s_add_u32 s52, s52, {65536 + 8*3328}
v_mov_b32 v8, s52
v_mov_b32 v9, 1
s_mov_b64 exec, 1
ds_add_u32 v8, v9
s_mov_b64 exec, -1""")
    lds_spin_ge(A, "L_ATT_WM", 9, 8, 2)
    A(f"""v_add_u32 v12, s54, v10
v_add_u32 v13, s54, v11""")
    for i in range(3): A(f"ds_read_b128 v[{O1+4*i}:{O1+4*i+3}], v12 offset:{1024*i}")
    A("ds_read_b32 v7, v13 offset:3072")
    A("""s_waitcnt lgkmcnt(0)
v_max_f32 v160, v6, v7
v_sub_f32 v161, v6, v160
v_sub_f32 v162, v7, v160
v_exp_f32 v161, v161
v_exp_f32 v162, v162
s_nop 0
v_add_f32 v163, v161, v162
v_rcp_f32 v163, v163
s_nop 0
v_mul_f32 v161, v161, v163
v_mul_f32 v162, v162, v163""")
    for r in range(12):
        A(f"v_mul_f32 v{O0+r}, v161, v{O0+r}")
        A(f"v_fma_f32 v{O0+r}, v162, v{O1+r}, v{O0+r}")
    for e in range(6): A(f"v_cvt_pk_bf16_f32 v{48+e}, v{O0+2*e}, v{O0+2*e+1}")
    A(f"""s_lshr_b32 s52, s51, 4
s_mul_i32 s52, s52, {O_TS}
s_lshr_b32 s53, s40, 1
s_mul_i32 s53, s53, 5
s_and_b32 s54, s40, 1
s_mul_i32 s55, s54, 3
s_add_u32 s55, s55, s53
s_lshl_b32 s55, s55, 8
s_add_u32 s55, s55, s52
s_add_u32 s55, s55, {O_OFF}
s_add_u32 s53, s53, 2
s_lshl_b32 s53, s53, 8
s_lshl_b32 s54, s54, 3
s_add_u32 s53, s53, s54
s_add_u32 s53, s53, s52
s_add_u32 s53, s53, {O_OFF}
v_bfe_u32 v10, v0, 4, 1
v_mul_u32_u24 v10, {O_TS}, v10
v_and_b32 v11, 15, v0
v_lshl_add_u32 v10, v11, 4, v10
v_lshrrev_b32 v11, 5, v0
v_lshl_add_u32 v11, v11, 8, v10
buffer_store_dwordx4 v[48:51], v11, s[32:35], s55 offen sc1
s_mov_b32 exec_hi, 0
buffer_store_dwordx2 v[52:53], v10, s[32:35], s53 offen sc1
s_mov_b64 exec, -1""")
    P.stamp(4)
```

```python
from mlib import *
import attn
G_OFF = WI_OFF + 8*WI_NS
G_SZ = 256*4*5120
WS2 = G_OFF + G_SZ
RED = 0
K2_LDS = 65536 + 8*3328 + 256
K2_SYNC = 65536 + 8*3328
def common_entry(A, P, end, nwaves_note=""):
    A(f"s_cmp_ge_u32 s2, 256\ns_cbranch_scc1 {end}")
    P.stamp(0)
    A("""s_load_dwordx4 s[4:7], s[0:1], 0
s_load_dwordx4 s[16:19], s[0:1], 48
s_load_dwordx4 s[20:23], s[0:1], 64
v_lshrrev_b32 v1, 6, v0
v_and_b32 v0, 63, v0
s_nop 0
v_readfirstlane_b32 s24, v1""")

def k2(A, P, END="L_K2_END"):
    import mlib
    common_entry(A, P, END)
    A(f"""v_lshlrev_b32 v2, 2, v0
v_add_u32 v2, {K2_SYNC}, v2
v_mov_b32 v3, 0
ds_write_b32 v2, v3
s_and_b32 s28, s24, 3
s_waitcnt lgkmcnt(0)""")
    srd(A, 32, 22, 23, WS2)
    A("s_barrier")
    A("s_cmp_lt_u32 s24, 8\ns_cbranch_scc0 L_K2_P")
    attn.attention(A, P)
    P.flush(5, vd=56)
    A("s_endpgm")
    A.label("L_K2_P")
    ACC = 8; SET = [88, 124]
    A(f"""s_and_b32 s52, s2, 7
s_bfe_u32 s53, s2, 0x20003
s_lshl_b32 s53, s53, 3
s_add_u32 s40, s52, s53
s_lshr_b32 s41, s2, 5
s_mul_i32 s42, s41, {WI_NS}
s_add_u32 s42, s42, {WI_OFF}
s_mul_i32 s52, s28, {12*5120}
s_add_u32 s44, s42, s52
s_add_u32 s45, s44, 4096
s_mul_i32 s46, s40, {4*H_TS}
s_mul_i32 s52, s28, {12*1024}
s_add_u32 s46, s46, s52
s_add_u32 s46, s46, {H_OFF}
v_lshlrev_b32 v2, 4, v0""")
    for m in range(1, 4): A(f"v_add_u32 v{2+m}, {m*H_TS}, v2")
    def ldw(s, cb):
        F = SET[s % 2] + 4*cb
        if cb < 4: A(f"buffer_load_dwordx4 v[{F}:{F+3}], v2, s[32:35], s44 offen offset:{1024*cb}")
        else: A(f"buffer_load_dwordx4 v[{F}:{F+3}], v2, s[32:35], s45 offen")
    def ldh(s, m):
        F = SET[s % 2] + 20 + 4*m
        A(f"buffer_load_dwordx4 v[{F}:{F+3}], v{2+m}, s[32:35], s46 offen")
    def adv():
        A("s_add_u32 s44, s44, 5120\ns_add_u32 s45, s45, 5120\ns_add_u32 s46, s46, 1024")
    q = []
    for s in range(2):
        for m in range(4): ldh(s, m); q.append(("H", s))
        for cb in range(5): ldw(s, cb); q.append(("W", s, cb))
        adv()
    for r in range(ACC, ACC + 80): A(f"v_mov_b32 v{r}, 0")
    def need(*tags):
        last = max(i for i, t in enumerate(q) if t in tags)
        A(f"s_waitcnt vmcnt({len(q) - 1 - last})")
    for s in range(12):
        F = SET[s % 2]
        for cb in range(5):
            need(("H", s), ("W", s, cb))
            for m in range(4):
                a = ACC + 4*(m*5 + cb)
                A(f"v_mfma_f32_16x16x32_bf16 v[{a}:{a+3}], v[{F+4*cb}:{F+4*cb+3}], v[{F+20+4*m}:{F+23+4*m}], v[{a}:{a+3}]")
            if s + 2 < 12 and cb > 0:
                ldw(s + 2, cb - 1); q.append(("W", s + 2, cb - 1))
        if s + 2 < 12:
            ldw(s + 2, 4); q.append(("W", s + 2, 4))
            for m in range(4): ldh(s + 2, m); q.append(("H", s + 2))
            adv()
    A("s_nop 7")
    P.stamp(1)
    A("v_lshlrev_b32 v2, 4, v0")
    G = 88
    for m in range(4):
        A(f"s_cmp_eq_u32 s28, {m}\ns_cbranch_scc1 L_P3_OWN{m}")
        A(f"""s_sub_u32 s52, s28, {m}
s_and_b32 s52, s52, 3
s_sub_u32 s52, s52, 1
s_mul_i32 s52, s52, 5120
s_add_u32 s52, s52, {RED + m*15360}
v_add_u32 v3, s52, v2""")
        for cb in range(5):
            a = ACC + 4*(m*5 + cb)
            A(f"ds_write_b128 v3, v[{a}:{a+3}] offset:{1024*cb}")
        A(f"s_branch L_P3_NXT{m}")
        A.label(f"L_P3_OWN{m}")
        for r in range(20): A(f"v_mov_b32 v{G+r}, v{ACC + 20*m + r}")
        A.label(f"L_P3_NXT{m}")
    A(f"""s_waitcnt lgkmcnt(0)
v_mov_b32 v6, {K2_SYNC + 32}
v_mov_b32 v7, 1
s_mov_b64 exec, 1
ds_add_u32 v6, v7
s_mov_b64 exec, -1""")
    lds_spin_ge(A, "L_P3_R1", 7, 6, 4)
    A(f"s_mul_i32 s52, s28, 15360\ns_add_u32 s52, s52, {RED}\nv_add_u32 v3, s52, v2")
    for sl in range(3):
        for cb in range(5):
            a = 8 + 20*sl + 4*cb
            A(f"ds_read_b128 v[{a}:{a+3}], v3 offset:{sl*5120 + 1024*cb}")
    A(f"""s_lshl_b32 s52, s40, 3
s_add_u32 s52, s52, s41
s_lshl_b32 s52, s52, 2
s_add_u32 s52, s52, s28
s_mul_i32 s52, s52, 5120
s_add_u32 s52, s52, {G_OFF}
s_add_u32 s53, s52, 4096
s_waitcnt lgkmcnt(0)""")
    for r in range(20):
        A(f"v_add_f32 v{G+r}, v{G+r}, v{8+r}")
        A(f"v_add_f32 v{28+r}, v{28+r}, v{48+r}")
    for r in range(20): A(f"v_add_f32 v{G+r}, v{G+r}, v{28+r}")
    for r in range(20): A(f"v_mul_f32 v{8+r}, 0xbfb8aa3b, v{G+r}")
    for r in range(20): A(f"v_exp_f32 v{8+r}, v{8+r}")
    for r in range(20): A(f"v_add_f32 v{8+r}, 1.0, v{8+r}")
    for r in range(20): A(f"v_rcp_f32 v{8+r}, v{8+r}")
    for r in range(20): A(f"v_mul_f32 v{G+r}, v{G+r}, v{8+r}")
    for cb in range(4): A(f"buffer_store_dwordx4 v[{G+4*cb}:{G+4*cb+3}], v2, s[32:35], s52 offen offset:{1024*cb} sc1")
    A(f"buffer_store_dwordx4 v[{G+16}:{G+19}], v2, s[32:35], s53 offen sc1")
    P.stamp(2)
    P.flush(3, vd=56)
    A.label(END)
    A("s_endpgm")

def k3(A, P, END="L_K3_END"):
    common_entry(A, P, END)
    A("s_load_dwordx2 s[8:9], s[0:1], 0")
    A(f"""s_and_b32 s52, s2, 7
s_bfe_u32 s53, s2, 0x20003
s_lshl_b32 s53, s53, 3
s_add_u32 s40, s52, s53
s_lshr_b32 s41, s2, 5
s_and_b32 s28, s24, 1
s_lshr_b32 s29, s24, 1
v_lshlrev_b32 v2, 4, v0
s_mul_i32 s42, s41, {WI_NS}
s_mul_i32 s52, s29, {5*5120}
s_add_u32 s42, s42, s52
s_add_u32 s42, s42, {WI_OFF + 48*5120}
s_lshl_b32 s52, s40, 2
s_lshl_b32 s53, s28, 1
s_add_u32 s52, s52, s53
s_mul_i32 s52, s52, {O_TS}
s_mul_i32 s53, s29, 5120
s_add_u32 s52, s52, s53
s_add_u32 s44, s52, {O_OFF}
v_add_u32 v3, 4096, v2
v_add_u32 v4, {O_TS}, v2
v_add_u32 v5, {O_TS + 4096}, v2
s_waitcnt lgkmcnt(0)""")
    srd(A, 32, 22, 23, WS2)
    W = 16; OF = 116; ACC = 156; GR = 196; XR_ = 206
    for s in range(5):
        for m in range(2):
            F = OF + 4*(2*s + m)
            r = (2 + 2*m) if s < 4 else (3 + 2*m)
            A(f"buffer_load_dwordx4 v[{F}:{F+3}], v{r}, s[32:35], s44 offen offset:{1024*(s % 4)}")
        for cb in range(5):
            F = W + 20*s + 4*cb
            if cb < 4: A(f"buffer_load_dwordx4 v[{F}:{F+3}], v2, s[32:35], s42 offen offset:{1024*cb}")
            else: A(f"buffer_load_dwordx4 v[{F}:{F+3}], v3, s[32:35], s42 offen")
        A("s_add_u32 s42, s42, 5120")
    srd(A, 48, 4, 5, 2048*1280)
    A(f"""s_lshr_b32 s30, s24, 1
s_and_b32 s31, s24, 1
s_mul_i32 s31, s31, 3
s_lshl_b32 s52, s40, 3
s_add_u32 s52, s52, s41
s_lshl_b32 s52, s52, 2
s_add_u32 s52, s52, s30
s_mul_i32 s52, s52, 5120
s_lshl_b32 s53, s31, 10
s_add_u32 s52, s52, s53
s_add_u32 s52, s52, {G_OFF}
s_lshl_b32 s53, s40, 6
s_lshl_b32 s54, s30, 4
s_add_u32 s53, s53, s54
s_mul_i32 s53, s53, 1280
s_mul_i32 s54, s41, 160
s_add_u32 s53, s53, s54
s_lshl_b32 s54, s31, 5
s_add_u32 s47, s53, s54
v_and_b32 v6, 15, v0
v_mul_u32_u24 v6, 1280, v6
v_lshrrev_b32 v7, 4, v0
v_lshl_add_u32 v6, v7, 3, v6""")
    for c in range(3):
        A(f"buffer_load_dwordx4 v[{GR+4*c}:{GR+4*c+3}], v2, s[32:35], s52 offen offset:{1024*c}")
        A(f"buffer_load_dwordx2 v[{208+2*c}:{209+2*c}], v6, s[48:51], s47 offen offset:{32*c}")
    for r in range(ACC, ACC + 40): A(f"v_mov_b32 v{r}, 0")
    P.stamp(1)
    for s in range(5):
        A(f"s_waitcnt vmcnt({6 + 7*(4 - s)})")
        for cb in range(5):
            for m in range(2):
                a = ACC + 20*m + 4*cb
                A(f"v_mfma_f32_16x16x32_bf16 v[{a}:{a+3}], v[{W+20*s+4*cb}:{W+20*s+4*cb+3}], v[{OF+4*(2*s+m)}:{OF+4*(2*s+m)+3}], v[{a}:{a+3}]")
    A(f"""s_lshl_b32 s52, s28, 1
s_mul_i32 s52, s52, {4*5120}
s_mul_i32 s53, s29, 5120
s_add_u32 s52, s52, s53
v_add_u32 v3, s52, v2
s_nop 7""")
    P.stamp(2)
    for m in range(2):
        if m: A(f"v_add_u32 v3, {4*5120}, v3")
        for cb in range(5):
            a = ACC + 20*m + 4*cb
            A(f"ds_write_b128 v3, v[{a}:{a+3}] offset:{1024*cb}")
    A(f"""s_waitcnt lgkmcnt(0)
s_barrier
s_mul_i32 s52, s30, {4*5120}
s_lshl_b32 s53, s31, 10
s_add_u32 s52, s52, s53
v_add_u32 v3, s52, v2""")
    for k in range(4):
        for c in range(3):
            a = 16 + 12*k + 4*c
            A(f"ds_read_b128 v[{a}:{a+3}], v3 offset:{k*5120 + 1024*c}")
    srd(A, 48, 18, 19, 2048*1280)
    A("s_waitcnt vmcnt(0)")
    for c in range(3):
        for k in range(2):
            A(f"v_lshlrev_b32 v{64+4*c+2*k}, 16, v{208+2*c+k}")
            A(f"v_and_b32 v{65+4*c+2*k}, 0xffff0000, v{208+2*c+k}")
    A("s_waitcnt lgkmcnt(0)")
    for r in range(12):
        A(f"v_add_f32 v{16+r}, v{16+r}, v{28+r}")
        A(f"v_add_f32 v{40+r}, v{40+r}, v{52+r}")
    for r in range(12): A(f"v_add_f32 v{16+r}, v{16+r}, v{40+r}")
    for r in range(12): A(f"v_fma_f32 v{16+r}, v{16+r}, v{GR+r}, v{64+r}")
    for c in range(3):
        for k in range(2): A(f"v_cvt_pk_bf16_f32 v{80+2*c+k}, v{16+4*c+2*k}, v{17+4*c+2*k}")
    for c in range(2): A(f"buffer_store_dwordx2 v[{80+2*c}:{81+2*c}], v6, s[48:51], s47 offen offset:{32*c}")
    A("s_cmp_eq_u32 s31, 0\ns_cbranch_scc0 L_K3_SK")
    A("buffer_store_dwordx2 v[84:85], v6, s[48:51], s47 offen offset:64")
    A.label("L_K3_SK")
    P.stamp(3)
    P.flush(4, vd=100)
    A.label(END)
    A("s_endpgm")
K3_LDS = 16*5120 + 1024
```

```python
import os
from asmlib import Asm, srd, kernel_begin, kernel_desc, HEADER

NAME = "recurrent_scan__mha_block__glu_gated_swiglu__prompt_kernel"
STAT_OFF = 0
CS_OFF   = 16384
QK_OFF   = 131072
QK_OS    = 32768
VT_OFF   = QK_OFF + 160*QK_OS
VT_GS    = 20480
H_OFF    = VT_OFF + 128*VT_GS
H_TS     = 49152
O_OFF    = H_OFF + 128*H_TS
O_TS     = 80*256
WI_OFF   = O_OFF + 128*O_TS
WI_NS    = 68*5120
WS_USED  = WI_OFF + 8*WI_NS
XR   = 0
WR   = 65536
WSL  = 12352
QSL  = 8192
NQS  = 9
GREG = 6176
MF   = 139648
CSPA = MF + 2048
CSPB = CSPA + 1024
SYNC = CSPB + 1536
JUNK = SYNC + 128
RS   = JUNK + 256
NL   = RS + 512
IR   = NL + 512
SCR  = 148480
LDS_TOTAL = 163840
assert IR + 512 <= SCR and SCR + 3*5120 == LDS_TOTAL
S_FULL = 0; S_FREEA = 16; S_FREEB = 32; S_TAB = 48; S_TABB = 52; S_QCNT = 56; S_QSIG = 60
S_HCNT = 64; S_HSIG = 68; S_QRDY = 72; S_HRDY = 76; S_OCNT = 80; S_ORDY = 84; S_MRG = 88; S_PRED = 104; S_WO = 108
LSPIN = 200000

PROF = int(os.environ.get("PROF", "0"))
PROF_OFF = 64 << 20
class Prof:
    def __init__(self, A, on=True):
        self.A, self.n, self.on = A, 0, on
    def stamp(self, idx=None):
        if not (PROF and self.on): return
        A = self.A
        if idx is None: idx = self.n
        assert idx < 9
        if idx == 0:
            A("s_memrealtime s[98:99]")
        A(f"s_memtime s[{80+2*idx}:{81+2*idx}]")
        A("s_waitcnt lgkmcnt(0)")
        self.n = idx + 1
    def flush(self, n, vd=2, vt=1):
        if not (PROF and self.on): return
        A = self.A
        A("s_memrealtime s[64:65]")
        A("s_waitcnt vmcnt(0) lgkmcnt(0)")
        A(f"s_add_u32 s68, s22, {PROF_OFF}")
        A("s_addc_u32 s69, s23, 0")
        A("s_and_b32 s69, s69, 0xffff")
        A(f"s_mov_b32 s70, {256*16*64}")
        A("s_mov_b32 s71, 0x00020000")
        A(f"v_mov_b32 v{vd}, s98")
        A(f"v_mov_b32 v{vd+1}, s64")
        for i in range(1, 14):
            if i in (7, 8):
                A(f"v_mov_b32 v{vd+1+i}, s{80+2*i}")
            elif i < n:
                A(f"s_sub_u32 s66, s{80+2*i}, s80")
                A(f"v_mov_b32 v{vd+1+i}, s66")
            else:
                A(f"v_mov_b32 v{vd+1+i}, 0")
        A(f"v_mov_b32 v{vd+15}, 1")
        A("s_lshl_b32 s66, s2, 4")
        A("s_add_u32 s66, s66, s24")
        A("s_lshl_b32 s66, s66, 6")
        A(f"v_mov_b32 v{vt}, 0")
        A("s_mov_b64 exec, 1")
        for i in range(4):
            A(f"buffer_store_dwordx4 v[{vd+4*i}:{vd+4*i+3}], v{vt}, s[68:71], s66 offen offset:{16*i}")
        A("s_waitcnt vmcnt(0)")
        A("s_mov_b64 exec, -1")

TR_OFF = PROF_OFF + (1 << 20)
TRV = 167
TRACE = int(os.environ.get("TRACE", "0"))
def trace_init(A):
    if TRACE: A(f"v_mov_b32 v{TRV}, 0")
def trace(A, idx, nowait=False):
    if not TRACE: return
    A("s_memtime s[100:101]")
    A("s_waitcnt lgkmcnt(0)")
    A("s_sub_u32 s100, s100, s80")
    A(f"v_writelane_b32 v{TRV}, s100, {idx}")
def trace_dyn(A, base, sreg):
    if not TRACE: return
    A("s_memtime s[100:101]")
    A("s_waitcnt lgkmcnt(0)")
    A("s_sub_u32 s100, s100, s80")
    A(f"s_add_u32 m0, {sreg}, {base}")
    A(f"v_writelane_b32 v{TRV}, s100, m0")
def trace_flush(A, vt=1):
    if not TRACE: return
    A(f"s_add_u32 s68, s22, {TR_OFF}")
    A("s_addc_u32 s69, s23, 0")
    A("s_and_b32 s69, s69, 0xffff")
    A(f"s_mov_b32 s70, {256*16*256}")
    A("s_mov_b32 s71, 0x00020000")
    A("s_lshl_b32 s66, s2, 4")
    A("s_add_u32 s66, s66, s24")
    A("s_lshl_b32 s66, s66, 8")
    A(f"v_lshlrev_b32 v{vt}, 2, v0")
    A(f"buffer_store_dword v{TRV}, v{vt}, s[68:71], s66 offen")
    A("s_waitcnt vmcnt(0)")

SPIN_MAX = 60000
def poll_flags(A, lbl, vtmp, vaddr, mask, scnt="s60"):
    A(f"s_mov_b32 {scnt}, 0")
    A.label(lbl)
    A(f"buffer_load_dword v{vtmp}, v{vaddr}, s[36:39], 0 offen sc1")
    A("s_waitcnt vmcnt(0)")
    if isinstance(mask, tuple):
        A(f"v_and_b32 v{vtmp}, v{mask[1]}, v{vtmp}")
        A(f"v_cmp_ne_u32 vcc, v{mask[1]}, v{vtmp}")
    else:
        A(f"v_and_b32 v{vtmp}, {hex(mask)}, v{vtmp}")
        A(f"v_cmp_ne_u32 vcc, {hex(mask)}, v{vtmp}")
    A(f"s_cbranch_vccz {lbl}_ok")
    A(f"s_add_u32 {scnt}, {scnt}, 1")
    A(f"s_cmp_lt_u32 {scnt}, {SPIN_MAX}")
    A(f"s_cbranch_scc0 {lbl}_ok")
    A(f"s_sleep {int(os.environ.get('PSLEEP', '2'))}")
    A(f"s_branch {lbl}")
    A.label(lbl + "_ok")

def signal(A, val, vtmp0, vtmp1):
    A(f"v_mov_b32 v{vtmp0}, {val}")
    A(f"v_mov_b32 v{vtmp1}, s2")
    A("s_mov_b64 exec, 1")
    A(f"buffer_store_byte v{vtmp0}, v{vtmp1}, s[36:39], 0 offen sc1")
    A("s_mov_b64 exec, -1")

class Lgk:
    def __init__(self, A, init=()):
        self.A, self.q = A, list(init)
    def issue(self, instr, tag):
        self.A(instr); self.q.append(tag)
    def need(self, *tags):
        idx = [i for i, t in enumerate(self.q) if t in tags]
        if not idx: return
        last = max(idx)
        n = min(len(self.q) - 1 - last, 15)
        self.A(f"s_waitcnt lgkmcnt({n})")
        self.q = self.q[len(self.q) - n:] if n else []

def lds_spin_ge(A, lbl, vdst, vaddr, need, scnt="s71", sleep=1):
    A(f"s_mov_b32 {scnt}, 0")
    A.label(lbl)
    A(f"ds_read_b32 v{vdst}, v{vaddr}")
    A("s_waitcnt lgkmcnt(0)")
    A(f"v_cmp_gt_u32 vcc, {need}, v{vdst}")
    A(f"s_cbranch_vccz {lbl}_ok")
    A(f"s_add_u32 {scnt}, {scnt}, 1")
    A(f"s_cmp_lt_u32 {scnt}, {LSPIN}")
    A(f"s_cbranch_scc0 {lbl}_ok")
    if sleep: A(f"s_sleep {sleep}")
    A(f"s_branch {lbl}")
    A.label(lbl + "_ok")

def lds_count(A, lbl_not_last, off, last, va, vb, vc, sres="s52"):
    A(f"v_mov_b32 v{va}, {SYNC + off}")
    A(f"v_mov_b32 v{vb}, 1")
    A("s_mov_b64 exec, 1")
    A(f"ds_add_rtn_u32 v{vc}, v{va}, v{vb}")
    A("s_waitcnt lgkmcnt(0)")
    A("s_mov_b64 exec, -1")
    A(f"v_readfirstlane_b32 {sres}, v{vc}")
    A(f"s_cmp_eq_u32 {sres}, {last}")
    A(f"s_cbranch_scc0 {lbl_not_last}")

def lds_add1(A, off, va, vb):
    A(f"v_mov_b32 v{va}, {SYNC + off}")
    A(f"v_mov_b32 v{vb}, 1")
    A("s_mov_b64 exec, 1")
    A(f"ds_add_u32 v{va}, v{vb}")
    A("s_mov_b64 exec, -1")

def lds_set(A, off, val, va, vb):
    A(f"v_mov_b32 v{va}, {SYNC + off}")
    A(f"v_mov_b32 v{vb}, {val}")
    A("s_mov_b64 exec, 1")
    A(f"ds_write_b32 v{va}, v{vb}")
    A("s_mov_b64 exec, -1")
```

```python
from mlib import *
ABL = os.environ.get('ABL','').split(',')
LAG = int(os.environ.get('LAG', '4'))
LAGB = int(os.environ.get('LAGB', '3'))

def entry(A, P):
    A(f"""s_cmp_ge_u32 s2, 256
s_cbranch_scc1 L_END""")
    P.stamp(0)
    A(f"""s_load_dwordx4 s[4:7], s[0:1], 0
s_load_dwordx2 s[8:9], s[0:1], 16
s_load_dwordx4 s[12:15], s[0:1], 32
s_load_dwordx4 s[16:19], s[0:1], 48
s_load_dwordx4 s[20:23], s[0:1], 64
v_lshrrev_b32 v1, 6, v0
v_and_b32 v0, 63, v0
v_lshlrev_b32 v2, 2, v0
v_add_u32 v2, {SYNC}, v2
v_mov_b32 v3, 0
ds_write_b32 v2, v3
s_and_b32 s52, s2, 7
s_lshr_b32 s53, s2, 3
v_readfirstlane_b32 s24, v1
s_and_b32 s54, s52, 1
s_lshl_b32 s54, s54, 3
s_and_b32 s55, s53, 7
s_add_u32 s25, s54, s55
s_lshr_b32 s54, s52, 1
s_lshl_b32 s54, s54, 2
s_lshr_b32 s55, s53, 3
s_add_u32 s26, s54, s55
s_min_u32 s27, s26, 14
s_and_b32 s28, s24, 3
s_waitcnt lgkmcnt(0)""")
    srd(A, 32, 22, 23, WS_USED)
    srd(A, 36, 20, 21, 256)
    trace_init(A)
    if PROF: A("s_mov_b32 s94, 0\ns_mov_b32 s96, 0")
    A("""s_cmp_lt_u32 s24, 4
s_cbranch_scc1 L_ROLE_A
s_cmp_lt_u32 s24, 8
s_cbranch_scc1 L_ROLE_B""")

def flag_addr(A, vd, off_expr_sgpr):
    A(f"""v_lshlrev_b32 v{vd}, 2, v0
v_add_u32 v{vd}, {JUNK}, v{vd}
s_add_u32 s52, {off_expr_sgpr}, {SYNC}
v_mov_b32 v1, s52
v_cmp_eq_u32 vcc, 0, v0
v_cndmask_b32 v{vd}, v{vd}, v1, vcc""")

def wq_slot(g): return WR + ((g - 11) % NQS)*QSL
def wg_slot(g): return WR + ((g - 20) % 6)*WSL
def w_range(g):
    return (wq_slot(g), wq_slot(g) + QSL) if g < 20 else (wg_slot(g), wg_slot(g) + WSL)

def rep_issue(A):
    A(f"""s_lshl_b32 s52, s28, 8
s_add_u32 s52, s52, s2
s_cmp_lt_u32 s52, 544
s_cbranch_scc0 L_P_NOREP
s_mul_i32 s53, s52, 964
s_lshr_b32 s53, s53, 16
s_mul_i32 s54, s53, 68
s_sub_u32 s54, s52, s54
s_mov_b32 s67, s53
s_mov_b32 s68, s54
s_cmp_lt_u32 s54, 48
s_cselect_b32 s48, s16, s8
s_cselect_b32 s49, s17, s9
s_mov_b32 s50, {640*1280}
s_cselect_b32 s50, {1536*1280}, s50
s_and_b32 s49, s49, 0xffff
s_mov_b32 s51, 0x00020000
s_mul_i32 s55, s53, 160
s_mul_i32 s56, s28, 5120
s_add_u32 s56, s56, {SCR}""")
    for i in range(5):
        A(f"""v_add_u32 v12, {64*i}, v0
v_mul_u32_u24 v13, 6554, v12
v_lshrrev_b32 v13, 16, v13
v_mul_u32_u24 v14, 10, v13
v_sub_u32 v12, v12, v14
v_lshrrev_b32 v14, 3, v13
v_bfe_u32 v15, v13, 2, 1
v_and_b32 v13, 3, v13
s_cmp_lt_u32 s54, 48
s_cbranch_scc0 L_P_WO{i}
v_lshrrev_b32 v60, 1, v14
v_lshlrev_b32 v60, 4, v60
v_and_b32 v61, 1, v14
v_lshl_add_u32 v60, v61, 2, v60
v_lshl_add_u32 v60, v15, 3, v60
s_lshl_b32 s57, s54, 5
v_add_u32 v60, s57, v60
s_branch L_P_WD{i}
L_P_WO{i}:
s_sub_u32 s57, s54, 48
s_lshl_b32 s57, s57, 2
v_add_u32 v60, s57, v14
v_mul_u32_u24 v61, 205, v60
v_lshrrev_b32 v61, 10, v61
v_mul_u32_u24 v62, 5, v61
v_sub_u32 v62, v60, v62
v_mul_u32_u24 v60, 40, v61
v_lshlrev_b32 v61, 3, v15
v_mul_u32_u24 v63, 20, v15
v_lshlrev_b32 v64, 2, v62
v_add_u32 v64, 8, v64
v_add_u32 v65, v64, v61
v_cmp_eq_u32 vcc, 0, v62
v_cndmask_b32 v65, v65, v61, vcc
v_add_u32 v64, 4, v61
v_cmp_eq_u32 vcc, 1, v62
v_cndmask_b32 v65, v65, v64, vcc
v_add_u32 v64, 16, v63
v_cmp_eq_u32 vcc, 2, v62
v_cndmask_b32 v65, v65, v64, vcc
v_add_u32 v60, v60, v65
L_P_WD{i}:
v_add_u32 v60, v60, v13
v_mul_u32_u24 v60, 1280, v60
v_lshl_add_u32 v60, v12, 4, v60
s_add_u32 m0, s56, {1024*i}
v_add_u32 v60, s55, v60
buffer_load_dwordx4 v60, s[48:51], 0 offen lds""")

def rep_finish(A):
    A(f"""v_lshrrev_b32 v12, 4, v0
v_bfe_u32 v13, v0, 2, 2
v_lshl_add_u32 v12, v12, 3, v13
v_mul_u32_u24 v12, 160, v12
v_and_b32 v13, 3, v0
v_lshl_add_u32 v12, v13, 3, v12
s_mul_i32 s52, s28, 5120
s_add_u32 s52, s52, {SCR}
v_add_u32 v12, s52, v12
s_mul_i32 s52, s67, 68
s_add_u32 s52, s52, s68
s_mul_i32 s52, s52, 5120
s_add_u32 s52, s52, {WI_OFF}
v_lshlrev_b32 v13, 4, v0
s_waitcnt vmcnt(0)""")
    for cb in range(5):
        for hf in range(2):
            A(f"ds_read_b64_tr_b16 v[{64+4*cb+2*hf}:{65+4*cb+2*hf}], v12 offset:{hf*640 + cb*32}")
    A("s_waitcnt lgkmcnt(0)")
    for cb in range(4):
        A(f"buffer_store_dwordx4 v[{64+4*cb}:{67+4*cb}], v13, s[32:35], s52 offen offset:{cb*1024} sc1")
    A(f"s_add_u32 s52, s52, 4096\nbuffer_store_dwordx4 v[80:83], v13, s[32:35], s52 offen sc1")

def role_p_p1(A, P):
    srd(A, 40, 4, 5, 2048*1280)
    A(f"""s_lshl_b32 s52, s25, 7
s_lshl_b32 s53, s28, 5
s_add_u32 s52, s52, s53
s_mul_i32 s52, s52, 1280
v_lshrrev_b32 v10, 3, v0
v_and_b32 v11, 7, v0
v_lshrrev_b32 v12, 4, v0
s_lshl_b32 s56, s28, 12""")
    for ii in range(4):
        if 'xlin' in ABL: A("v_mov_b32 v14, v11")
        elif 'xhalf' in ABL: A(f"v_xor_b32 v14, {(ii & 1) << 2}, v11")
        else: A(f"v_xor_b32 v14, {(ii & 1) << 2}, v12\nv_xor_b32 v14, v14, v11")
        A(f"""
v_add_u32 v15, {8*ii}, v10
v_mul_u32_u24 v15, 1280, v15
v_lshl_add_u32 v15, v14, 4, v15
v_add_u32 v15, s52, v15
v_subrev_u32 v{2+ii}, {1024*ii}, v15""")
    issued = []
    def dma_x(slot):
        A(f"s_add_u32 m0, s56, {XR + (slot % 4)*16384}")
        A(f"s_mov_b32 s60, {(slot % 10)*128 if 'samek' not in ABL else 0}")
        for ii in range(4):
            A(f"buffer_load_dwordx4 v{2+ii}, s[40:43], s60 offen offset:{1024*ii} lds")
            issued.append(("X", slot))
    def dma_w(g):
        if g < 20:
            A(f"s_add_u32 m0, s57, {wq_slot(g)}")
            A(f"s_mov_b32 s61, {g*122880 if 'samek' not in ABL else 0}")
            for ii in range(2):
                A(f"buffer_load_dwordx4 v{6+ii}, s[44:47], s61 offen offset:{1024*ii} lds")
                issued.append(("W", g))
        else:
            A(f"s_add_u32 m0, s58, {wg_slot(g)}")
            A(f"s_mov_b32 s61, {(g-20)*(12288 if 'gulin' in ABL else 98304) if 'samek' not in ABL else 0}")
            for ii, r in enumerate((8, 9, 13)):
                A(f"buffer_load_dwordx4 v{r}, s[48:51], s61 offen offset:{1024*ii} lds")
                issued.append(("W", g))
    dma_x(0)
    srd(A, 44, 6, 7, 640*3840)
    A(f"""s_lshl_b32 s53, s28, 3
s_lshl_b32 s54, s27, 8
v_and_b32 v14, 15, v0
v_lshlrev_b32 v15, 2, v12
v_xor_b32 v14, v14, v15
v_add_u32 v15, s53, v12
v_mul_u32_u24 v15, 3840, v15
v_lshl_add_u32 v15, v14, 4, v15
v_add_u32 v6, s54, v15
v_add_u32 v7, {4*3840 - 1024}, v6
s_lshl_b32 s57, s28, 11""")
    dma_w(0); dma_w(1)
    dma_x(1); dma_w(2)
    A("s_barrier")
    if 'pprio' in ABL: A("s_setprio 3")
    A(f"""s_lshr_b32 s53, s28, 1
s_cmp_eq_u32 s53, 0
s_cselect_b32 s48, s12, s14
s_cselect_b32 s49, s13, s15
s_and_b32 s49, s49, 0xffff
s_mov_b32 s50, {640*3072}
s_mov_b32 s51, 0x00020000
s_mul_i32 s58, s53, {GREG}
s_and_b32 s54, s28, 1
s_mul_i32 s55, s54, 3072
s_add_u32 s58, s58, s55
s_mul_i32 s54, s54, 192
s_mul_i32 s55, s26, 192""")
    for ii, r in enumerate((8, 9, 13)):
        A(f"""v_add_u32 v14, {64*ii}, v0
v_add_u32 v14, s54, v14
v_mul_u32_u24 v15, 5462, v14
v_lshrrev_b32 v15, 16, v15
v_mul_u32_u24 v16, 12, v15
v_sub_u32 v14, v14, v16
v_mul_u32_u24 v15, 3072, v15
v_lshl_add_u32 v15, v14, 4, v15
v_add_u32 v15, s55, v15
v_subrev_u32 v{r}, {1024*ii}, v15""")
    if 'gulin' in ABL:
        A(f"""s_mov_b32 s48, s22
s_and_b32 s49, s23, 0xffff
s_mov_b32 s50, {WS_USED}
s_mul_i32 s55, s26, {20*12288}
s_mul_i32 s54, s28, 3072
s_add_u32 s55, s55, s54
v_lshlrev_b32 v8, 4, v0
v_add_u32 v8, s55, v8
v_mov_b32 v9, v8
v_mov_b32 v13, v8""")
    A(f"""v_and_b32 v20, 7, v0
v_lshlrev_b32 v20, 2, v20
v_add_u32 v20, {SYNC + S_FREEA}, v20
s_lshl_b32 s53, s28, 2""")
    flag_addr(A, 21, "s53")
    def wait_landed(stage):
        need = [("W", stage), ("X", stage >> 1)]
        last = max(i for i, t in enumerate(issued) if t in need)
        n = len(issued) - 1 - last
        A(f"s_waitcnt vmcnt({n})")
        A(f"v_mov_b32 v22, {stage + 1}")
        A("ds_write_b32 v21, v22")
    A("""v_and_b32 v25, 7, v0
v_cmp_gt_u32 vcc, 4, v25
v_cndmask_b32 v25, 0, 1, vcc
v_sub_u32 v26, 1, v25
ds_read_b32 v23, v20""")
    pslow = []
    def wait_free(a, b, lbl):
        if (a > 0 or b > 0) and 'ponly' not in ABL:
            A(f"v_mul_u32_u24 v24, {a}, v25")
            A(f"v_mad_u32_u24 v24, v26, {b}, v24")
            A("s_waitcnt lgkmcnt(0)")
            A("v_cmp_gt_u32 vcc, v24, v23")
            A(f"s_cbranch_vccnz {lbl}_S")
            A.label(lbl + "_ok")
            pslow.append(lbl)
            A("ds_read_b32 v23, v20")
    def emit_pslow():
        for lbl in pslow:
            A.label(lbl + "_S")
            A("s_mov_b32 s59, 0")
            A.label(lbl + "_L")
            if PROF: A("s_add_u32 s96, s96, 1")
            A("ds_read_b32 v23, v20")
            A("s_waitcnt lgkmcnt(0)")
            A("v_cmp_gt_u32 vcc, v24, v23")
            A(f"s_cbranch_vccz {lbl}_ok")
            A("s_add_u32 s59, s59, 1")
            A(f"s_cmp_lt_u32 s59, {LSPIN}")
            A(f"s_cbranch_scc0 {lbl}_ok")
            A("s_sleep 1")
            A(f"s_branch {lbl}_L")
    trace(A, 62)
    signaled = 0
    LAGS = {3: 3, 4: 3, 5: 3, 6: 4, 7: 4}
    for s in range(3, 40):
        lag = LAGS.get(s, LAG if s < 24 else LAGB)
        while signaled <= s - lag:
            wait_landed(signaled)
            if signaled < 40: trace(A, signaled)
            signaled += 1
        ra = rb = 0
        lo, hi = w_range(s)
        prev = [t for t in range(s) if w_range(t)[0] < hi and w_range(t)[1] > lo]
        if prev:
            t = max(prev)
            if t < 20: ra = max(ra, t + 1)
            else: rb = max(rb, t + 1)
        if s % 2 == 0 and s // 2 >= 4:
            t = s - 7
            if t < 20: ra = max(ra, t + 1); rb = max(rb, t + 1)
            else: rb = max(rb, t + 1)
        wait_free(ra, rb, f"L_PF{s}")
        if 'nodma' not in ABL:
            if s % 2 == 0: dma_x(s // 2)
            dma_w(s)
        else:
            issued.append(("X", s//2)); issued.append(("W", s))
    sig0 = signaled
    rep_issue(A)
    saved = list(issued)
    for _ in range(5): issued.append(("R", 0))
    while signaled < 40:
        wait_landed(signaled); trace(A, signaled); signaled += 1
    rep_finish(A)
    A("s_branch L_P_REPD")
    A.label("L_P_NOREP")
    issued[:] = saved
    signaled = sig0
    while signaled < 40:
        wait_landed(signaled); signaled += 1
    A("s_branch L_P_REPD")
    emit_pslow()
    A.label("L_P_REPD")
    P.stamp(1)

def x_addr(A, blk_sreg, shift, base):
    A(f"""v_and_b32 v14, 31, v0
v_lshrrev_b32 v15, 5, v0
v_bfe_u32 v16, v0, 1, 3
s_lshl_b32 s52, s{blk_sreg}, {shift}
v_lshlrev_b32 v14, 7, v14
v_add_u32 v14, s52, v14""")
    for kk in range(4):
        A(f"""v_xor_b32 v17, {2*kk}, v15
v_xor_b32 v17, v17, v16
v_lshl_add_u32 v{base+kk}, v17, 4, v14""")

def cons_flags(A, free_off):
    A(f"""v_and_b32 v8, 3, v0
v_lshlrev_b32 v8, 2, v8
v_add_u32 v8, {SYNC + S_FULL}, v8
s_lshl_b32 s53, s28, 2
s_add_u32 s53, s53, {free_off}""")
    flag_addr(A, 10, "s53")

def sel_init(A):
    A("""v_and_b32 v12, 15, v0
v_bfe_u32 v13, v0, 4, 1
v_cmp_eq_u32 vcc, v12, v13
v_mov_b32 v13, 0x3f803f80
v_cndmask_b32 v12, 0, v13, vcc
v_mov_b32 v13, v12
v_mov_b32 v14, v12
v_mov_b32 v15, v12""")

def consumer_loop(A, lbl, niter, SETS, D, ACC, nN, swap, w_reads, nW, CS, nslots, slotsz, last):
    S = len(SETS); rolling = (S == D)
    def xr(r, m):
        F = SETS[r % S]
        return f"ds_read_b128 v[{F+4*m}:{F+4*m+3}], v{2 + r % 4} offset:{4096*m}"
    def body(A, L, slow):
        def mf(n, m, j):
            cur = SETS[n % S]
            a = ACC + 16*(m*nN + j)
            w = f"v[{cur+8+4*j}:{cur+11+4*j}]"; x = f"v[{cur+4*m}:{cur+4*m+3}]"
            if 'nomfma' in ABL: return
            if swap: A(f"v_mfma_f32_32x32x16_bf16 v[{a}:{a+15}], {x}, {w}, v[{a}:{a+15}]")
            else:    A(f"v_mfma_f32_32x32x16_bf16 v[{a}:{a+15}], {w}, {x}, v[{a}:{a+15}]")
        for n in range(4):
            r = n + D
            cur = SETS[n % S]
            w = w_reads(SETS[r % S], r % 2)
            T = lambda name, q: (name, q % 4)
            def rd_x(m):
                if 'nolds' not in ABL: L.issue(xr(r, m), T(f"X{m}", r))
                if m == 1: A(f"v_add_u32 v{2 + r % 4}, s62, v{2 + r % 4}")
            def rd_w(j):
                if 'nolds' in ABL or 'noldsw' in ABL: return
                for t in w[j]: L.issue(t, T(f"W{j}", r))
            def check():
                if 'nochk' in ABL: return
                L.need(T("F", r))
                A("v_cmp_gt_u32 vcc, s70, v9")
                A(f"s_cbranch_vccnz {lbl}_S{n}")
                A.label(f"{lbl}_B{n}")
                slow.append(n)
                L.issue("ds_read_b32 v9, v8", T("F", r + 2))
                A("s_add_u32 s70, s70, 1")
                A(f"s_min_u32 s70, s70, {last}")
            def after_last_read():
                if r % 2 == 1:
                    A("s_add_u32 s67, s67, 1")
                    A(f"s_cmp_eq_u32 s67, {nslots}")
                    A(f"s_cselect_b32 s63, s68, {slotsz}")
                    A("s_cselect_b32 s67, 0, s67")
                    for q in range(nW): A(f"v_add_u32 v{6+q}, s63, v{6+q}")
                if r % 4 == 3:
                    A("s_add_u32 s64, s64, 1")
                    A("s_and_b32 s64, s64, 3")
                    A("s_cmp_eq_u32 s64, 3")
                    A("s_cselect_b32 s62, s66, 0x4000")
            def colsum():
                if 'nocs' in ABL: return
                A(f"s_cmp_eq_u32 s29, {n % 2}")
                A(f"s_cbranch_scc0 {lbl}_C{n}")
                for j in range(nN):
                    A(f"v_mfma_f32_16x16x32_bf16 v[{CS+4*j}:{CS+4*j+3}], v[12:15], v[{cur+8+4*j}:{cur+11+4*j}], v[{CS+4*j}:{CS+4*j+3}]")
                A.label(f"{lbl}_C{n}")
            def free():
                if n % 2 == 1:
                    A("v_add_u32 v11, 1, v11")
                    L.issue("ds_write_b32 v10, v11", T("FW", n))
            if rolling:
                for j in range(nN):
                    L.need(T("X0", n), T(f"W{j}", n))
                    mf(n, 0, j)
                if r % 2 == 0: check()
                colsum()
                rd_x(0)
                L.need(T("X1", n))
                free()
                for j in range(nN):
                    mf(n, 1, j)
                    rd_w(j)
                rd_x(1)
                after_last_read()
            else:
                L.need(T("X0", n), T("W0", n))
                mf(n, 0, 0)
                if r % 2 == 0: check()
                rd_x(0); rd_w(0)
                for j in range(1, nN):
                    L.need(T(f"W{j}", n))
                    mf(n, 0, j)
                    rd_w(j)
                L.need(T("X1", n))
                free()
                mf(n, 1, 0)
                rd_x(1)
                after_last_read()
                for j in range(1, nN): mf(n, 1, j)
                colsum()
    L0 = Lgk(Asm()); body(L0.A, L0, [])
    body(L0.A, L0, [])
    init = list(L0.q)
    L = Lgk(A, init); slow = []
    A.label(lbl)
    body(A, L, slow)
    assert L.q == init, (L.q, init)
    trace_dyn(A, 0 if nN == 2 else 42, "s61")
    A(f"s_add_u32 s61, s61, 1")
    A(f"s_cmp_lt_u32 s61, {niter}")
    A(f"s_cbranch_scc1 {lbl}")
    def emit_slow():
        for kk in slow:
            A.label(f"{lbl}_S{kk}")
            A("s_mov_b32 s71, 0")
            if PROF: A("s_add_u32 s94, s94, 1")
            A.label(f"{lbl}_SL{kk}")
            if PROF: A("s_add_u32 s96, s96, 1")
            A("ds_read_b32 v9, v8")
            A("s_waitcnt lgkmcnt(0)")
            A("v_cmp_gt_u32 vcc, s70, v9")
            A(f"s_cbranch_vccz {lbl}_B{kk}")
            A("s_add_u32 s71, s71, 1")
            A(f"s_cmp_lt_u32 s71, {LSPIN}")
            A(f"s_cbranch_scc1 {lbl}_SL{kk}")
            A(f"s_branch {lbl}_B{kk}")
    return emit_slow

def pre_reads(A, SETS, D, nN, w_reads, nW, nslots, slotsz, lbl, full0):
    S = len(SETS)
    for r in range(D):
        if r == 2: lds_spin_ge(A, lbl + "_P2", 9, 8, full0 + 1)
        F = SETS[r % S]
        w = w_reads(F, r % 2)
        A(f"ds_read_b128 v[{F}:{F+3}], v{2 + r} offset:0")
        for j in range(nN):
            for t in w[j]: A(t)
        A(f"ds_read_b128 v[{F+4}:{F+7}], v{2 + r} offset:4096")
        A(f"v_add_u32 v{2 + r}, s62, v{2 + r}")
        if r % 2 == 1:
            A("s_add_u32 s67, s67, 1")
            A(f"s_cmp_eq_u32 s67, {nslots}")
            A(f"s_cselect_b32 s63, s68, {slotsz}")
            A("s_cselect_b32 s67, 0, s67")
            for q in range(nW): A(f"v_add_u32 v{6+q}, s63, v{6+q}")
    A("ds_read_b32 v9, v8")
    A("s_waitcnt lgkmcnt(0)")

def cs_partials(A, CS, nN, base):
    A(f"""s_lshl_b32 s52, s30, 1
s_add_u32 s52, s52, s29
s_mul_i32 s52, s52, {nN*128}
s_add_u32 s52, s52, {base}
v_lshlrev_b32 v2, 2, v0
v_add_u32 v2, s52, v2
s_mov_b64 exec, 0xffff""")
    for n in range(nN):
        A(f"ds_write2_b32 v2, v{CS+4*n}, v{CS+4*n+1} offset0:{32*n} offset1:{32*n+16}")
    A("s_mov_b64 exec, -1")
    A("s_waitcnt lgkmcnt(0)")

def cs_frags(A, FR, nN, base):
    A(f"""s_mul_i32 s52, s30, {2*nN*128}
s_add_u32 s52, s52, {base}
v_and_b32 v3, 31, v0
v_lshlrev_b32 v3, 2, v3
v_add_u32 v3, s52, v3""")
    for n in range(nN):
        A(f"ds_read_b32 v{FR+4*n}, v3 offset:{128*n}")
        A(f"ds_read_b32 v{FR+4*n+1}, v3 offset:{128*(nN+n)}")
    A("v_cmp_gt_u32 vcc, 32, v0")
    A("s_waitcnt lgkmcnt(0)")
    for n in range(nN):
        r = FR + 4*n
        A(f"""v_add_f32 v{r+2}, v{r}, v{r+1}
v_cndmask_b32 v{r+2}, 0, v{r+2}, vcc
v_cvt_pk_bf16_f32 v{r}, v{r+2}, v{r+2}
v_and_b32 v{r+3}, 0xffff0000, v{r}
v_sub_f32 v{r+3}, v{r+2}, v{r+3}
v_cvt_pk_bf16_f32 v{r+1}, v{r+3}, v{r+3}
v_mov_b32 v{r+2}, 0
v_mov_b32 v{r+3}, 0""")

def mf_frags(A, FR):
    A(f"""v_lshlrev_b32 v2, 3, v0
s_lshl_b32 s52, s29, 10
s_add_u32 s52, s52, {MF}
v_add_u32 v3, s52, v2
ds_read_b64 v[{FR}:{FR+1}], v3
ds_read_b64 v[{FR+4}:{FR+5}], v3 offset:512
v_mov_b32 v{FR+2}, 0
v_mov_b32 v{FR+3}, 0
v_mov_b32 v{FR+6}, 0
v_mov_b32 v{FR+7}, 0""")

A_ACC = 16; A_SETS = [80, 96, 112, 128]; A_D = 3; A_CS = 144
def role_a_p1(A, P):
    A(f"""s_and_b32 s29, s28, 1
s_lshr_b32 s30, s28, 1
s_mul_i32 s31, s27, 13
s_lshr_b32 s31, s31, 6""")
    x_addr(A, 29, 13, 2)
    A(f"""v_lshrrev_b32 v14, 5, v0
v_bfe_u32 v15, v0, 2, 2
v_lshl_add_u32 v14, v14, 3, v15
v_lshlrev_b32 v14, 8, v14
v_bfe_u32 v16, v0, 4, 1
v_lshl_add_u32 v14, v16, 5, v14
v_and_b32 v16, 3, v0
v_lshl_add_u32 v14, v16, 3, v14
v_add_u32 v14, {wq_slot(0)}, v14
s_lshl_b32 s52, s30, 1""")
    for jj in range(2):
        A(f"""s_add_u32 s53, s52, {jj}
v_xor_b32 v16, s53, v15
v_lshl_add_u32 v{6+jj}, v16, 6, v14""")
    cons_flags(A, S_FREEA)
    sel_init(A)
    for r in range(A_ACC, A_ACC + 64): A(f"v_mov_b32 v{r}, 0")
    for r in range(A_CS, A_CS + 8): A(f"v_mov_b32 v{r}, 0")
    def w_reads(F, k16):
        return [[f"ds_read_b64_tr_b16 v[{F+8+4*n+2*hf}:{F+9+4*n+2*hf}], v{6+n} offset:{k16*4096 + hf*1024}" for hf in range(2)] for n in range(2)]
    A(f"""v_mov_b32 v11, 0
s_mov_b32 s61, 0
s_mov_b32 s62, 0x4000
s_mov_b32 s64, 0
s_mov_b32 s66, {(-49152) & 0xffffffff}
s_mov_b32 s67, {(0 - 11) % NQS}
s_mov_b32 s68, {(-(NQS-1)*QSL) & 0xffffffff}
s_mov_b32 s70, {2 + (A_D - 2)}""")
    A("s_barrier")
    if 'ponly' in ABL: A("s_endpgm")
    trace(A, 62)
    lds_spin_ge(A, "L_A_W0", 9, 8, 1)
    trace(A, 63)
    sub = Asm()
    slow1 = consumer_loop(sub, "L_A_LOOP", 10, A_SETS, A_D, A_ACC, 2, False, w_reads, 2, A_CS, NQS, QSL, 20)
    sub2 = Asm()
    slow2 = consumer_loop(sub2, "L_A_LOOPV", 10, A_SETS, A_D, A_ACC, 2, True, w_reads, 2, A_CS, NQS, QSL, 20)
    pre_reads(A, A_SETS, A_D, 2, w_reads, 2, NQS, QSL, "L_A", 1)
    A("""s_cmp_eq_u32 s31, 2
s_cbranch_scc1 L_A_LOOPV""")
    A.lines += sub.lines
    A("s_branch L_A_P1A_DONE")
    n0 = len(sub.lines); slow1(); A.lines += sub.lines[n0:]
    A.lines += sub2.lines
    A("s_branch L_A_P1A_DONE")
    n0 = len(sub2.lines); slow2(); A.lines += sub2.lines[n0:]
    A.label("L_A_P1A_DONE")
    P.stamp(1)
    trace(A, 20)
    A("s_nop 7\ns_waitcnt lgkmcnt(0)")
    cs_partials(A, A_CS, 2, CSPA)
    lds_add1(A, S_TAB, 2, 3)
    A(f"v_mov_b32 v8, {SYNC + S_TAB}")
    lds_spin_ge(A, "L_A_TAB", 9, 8, 8)
    trace(A, 21)
    mf_frags(A, 80)
    cs_frags(A, 88, 2, CSPA)
    A(f"""v_and_b32 v4, 31, v0
v_lshrrev_b32 v5, 5, v0
s_lshl_b32 s52, s29, 8
s_add_u32 s52, s52, {RS}
v_lshlrev_b32 v3, 2, v4
v_add_u32 v3, s52, v3
ds_read_b32 v96, v3
ds_read_b32 v97, v3 offset:128
s_waitcnt lgkmcnt(0)
s_cmp_eq_u32 s31, 2
s_cbranch_scc1 L_A_FOLDV""")
    def fold(swap):
        s = ""
        for m in range(2):
            for n in range(2):
                a = A_ACC + 16*(m*2 + n)
                x = f"v[{80+4*m}:{83+4*m}]"; w = f"v[{88+4*n}:{91+4*n}]"
                s += f"v_mfma_f32_32x32x16_bf16 v[{a}:{a+15}], {x if swap else w}, {w if swap else x}, v[{a}:{a+15}]\n"
        return s
    A(fold(False) + "s_branch L_A_FOLDD\nL_A_FOLDV:\n" + fold(True) + "L_A_FOLDD:")
    A(f"""s_cmp_eq_u32 s31, 0
s_cselect_b32 s52, 0x3ea52b5c, 1.0
v_mul_f32 v96, s52, v96
v_mul_f32 v97, s52, v97
v_lshlrev_b32 v6, 4, v4
v_mul_u32_u24 v7, {QK_OS}, v5
v_add_u32 v7, v7, v6
v_mul_u32_u24 v8, 10240, v5
v_add_u32 v8, v8, v6
s_mul_i32 s52, s31, 5
s_sub_u32 s52, s27, s52
s_lshl_b32 s53, s52, 4
s_lshl_b32 s54, s30, 3
s_add_u32 s53, s53, s54
s_mul_i32 s54, s31, 80
s_add_u32 s53, s53, s54
s_mul_i32 s53, s53, {QK_OS}
s_lshl_b32 s54, s25, 7
s_lshl_b32 s55, s29, 6
s_add_u32 s54, s54, s55
s_lshl_b32 s55, s54, 4
s_add_u32 s53, s53, s55
s_add_u32 s56, s53, {QK_OFF}
s_lshr_b32 s54, s54, 4
s_mul_i32 s54, s54, {VT_GS}
s_lshl_b32 s52, s52, 7
s_lshl_b32 s55, s30, 6
s_add_u32 s52, s52, s55
s_lshl_b32 s52, s52, 4
s_add_u32 s54, s54, s52
s_add_u32 s57, s54, {VT_OFF}
s_lshl_b32 s52, s29, 8
v_lshlrev_b32 v9, 4, v5
v_add_u32 v9, s52, v9
v_add_u32 v9, {RS}, v9
s_cmp_eq_u32 s26, 15
s_cbranch_scc1 L_A_EPI_D
s_cmp_eq_u32 s31, 2
s_cbranch_scc1 L_A_EPI_V""")
    for t in range(4):
        m, n = t >> 1, t & 1
        a = A_ACC + 16*(m*2 + n)
        for p in range(2):
            T = 100 + 4*p
            for e in range(8): A(f"v_mul_f32 v{a+8*p+e}, v{96+m}, v{a+8*p+e}")
            for e in range(4): A(f"v_cvt_pk_bf16_f32 v{T+e}, v{a+8*p+2*e}, v{a+8*p+2*e+1}")
            A(f"s_add_u32 s52, s56, {(4*n + 2*p)*QK_OS + 32*m*16}")
            A(f"s_nop 0\nv_permlane32_swap_b32 v{T}, v{T+2}\nv_permlane32_swap_b32 v{T+1}, v{T+3}")
            A(f"buffer_store_dwordx4 v[{T}:{T+3}], v7, s[32:35], s52 offen sc1")
    A("s_branch L_A_EPI_D")
    A.label("L_A_EPI_V")
    for t in range(4):
        m, n = t >> 1, t & 1
        a = A_ACC + 16*(m*2 + n)
        if n == 0:
            for i in range(4): A(f"ds_read_b128 v[{108+4*i}:{111+4*i}], v9 offset:{m*128 + 32*i}")
            A("s_waitcnt lgkmcnt(0)")
        for p in range(2):
            T = 100 + 4*p
            for e in range(8): A(f"v_mul_f32 v{a+8*p+e}, v{108+8*p+e}, v{a+8*p+e}")
            for e in range(4): A(f"v_cvt_pk_bf16_f32 v{T+e}, v{a+8*p+2*e}, v{a+8*p+2*e+1}")
            A(f"s_add_u32 s52, s57, {(2*m + p)*VT_GS + 32*n*16}")
            A(f"buffer_store_dwordx4 v[{T}:{T+3}], v8, s[32:35], s52 offen sc1")
    A.label("L_A_EPI_D")
    P.stamp(2)
    trace(A, 22)
    P.stamp(3)

B_ACC = 16; B_SETS = [112, 132]; B_D = 2; B_CS = 152
def role_b_p1(A, P):
    A("""v_and_b32 v14, 15, v0
v_lshrrev_b32 v15, 4, v0
v_bfe_u32 v16, v0, 1, 3
s_lshl_b32 s52, s28, 12
v_lshlrev_b32 v14, 7, v14
v_add_u32 v14, s52, v14
v_xor_b32 v17, v15, v16
v_lshl_add_u32 v164, v17, 4, v14
v_xor_b32 v17, 4, v17
v_lshl_add_u32 v165, v17, 4, v14""")
    A("s_and_b32 s29, s28, 1\ns_lshr_b32 s30, s28, 1")
    x_addr(A, 29, 13, 2)
    A(f"""v_lshrrev_b32 v14, 5, v0
v_bfe_u32 v15, v0, 2, 2
v_lshl_add_u32 v14, v14, 3, v15
v_mul_u32_u24 v14, 192, v14
v_bfe_u32 v16, v0, 4, 1
v_mul_u32_u24 v16, {GREG}, v16
v_add_u32 v14, v14, v16
v_and_b32 v16, 3, v0
v_lshl_add_u32 v14, v16, 3, v14
s_mul_i32 s52, s30, 96
s_add_u32 s52, s52, {wg_slot(20)}
v_add_u32 v6, s52, v14""")
    for q in range(4): A(f"v_add_u32 v{2+q}, {2*16384}, v{2+q}")
    cons_flags(A, S_FREEB)
    sel_init(A)
    for r in range(B_ACC, B_ACC + 96): A(f"v_mov_b32 v{r}, 0")
    for r in range(144, 160): A(f"v_mov_b32 v{r}, 0")
    for r in range(160, 164): A(f"v_mov_b32 v{r}, 0x3f803f80")
    A(f"""v_mov_b32 v11, 0
s_mov_b32 s64, 0
s_mov_b32 s66, {(-49152) & 0xffffffff}""")
    A("s_barrier")
    if 'ponly' in ABL: A("s_endpgm")
    trace(A, 62)
    def st_reads(i):
        F = 112 + 16*(i & 1)
        for tb in range(2):
            for k in range(2):
                A(f"ds_read_b128 v[{F+8*tb+4*k}:{F+8*tb+4*k+3}], v{164+k} offset:{2048*tb}")
        d = 0x4000 if (i & 3) != 3 else (-49152) & 0xffffffff
        A(f"s_mov_b32 s62, {d}")
        for k in range(2): A(f"v_add_u32 v{164+k}, s62, v{164+k}")
    def st_comp(i):
        F = 112 + 16*(i & 1)
        if 'nostat' in ABL: return
        for k in range(2):
            for tb in range(2):
                f = f"v[{F+8*tb+4*k}:{F+8*tb+4*k+3}]"
                A(f"v_mfma_f32_16x16x32_bf16 v[{144+4*tb}:{147+4*tb}], v[160:163], {f}, v[{144+4*tb}:{147+4*tb}]")
                A(f"v_mfma_f32_16x16x32_bf16 v[{152+4*tb}:{155+4*tb}], {f}, {f}, v[{152+4*tb}:{155+4*tb}]")
    lds_spin_ge(A, "L_B_ST0", 9, 8, 1)
    st_reads(0)
    for i in range(10):
        if i < 9: A("ds_read_b32 v9, v8")
        if i > 0: st_comp(i - 1)
        A("s_waitcnt lgkmcnt(0)")
        A("v_add_u32 v11, 2, v11")
        A("ds_write_b32 v10, v11")
        if i < 9:
            A(f"v_cmp_gt_u32 vcc, {2*(i+1)+1}, v9")
            A(f"s_cbranch_vccz L_B_STOK{i}")
            lds_spin_ge(A, f"L_B_STW{i}", 9, 8, 2*(i+1)+1)
            A.label(f"L_B_STOK{i}")
            st_reads(i + 1)
    st_comp(9)
    trace(A, 19)
    A("""s_nop 7
v_and_b32 v112, 3, v0
v_bfe_u32 v113, v0, 2, 2
v_lshrrev_b32 v114, 4, v0
v_cmp_eq_u32 s[52:53], v113, v114""")
    for tb in range(2):
        q = 152 + 4*tb; d = 116 + tb
        A(f"""v_cmp_eq_u32 vcc, 1, v112
v_cndmask_b32 v{d}, v{q}, v{q+1}, vcc
v_cmp_eq_u32 vcc, 2, v112
v_cndmask_b32 v{d}, v{d}, v{q+2}, vcc
v_cmp_eq_u32 vcc, 3, v112
v_cndmask_b32 v{d}, v{d}, v{q+3}, vcc
v_cndmask_b32 v{d}, 0, v{d}, s[52:53]""")
    for tb in range(2):
        d = 116 + tb
        A(f"""v_mov_b32 v118, v{d}
s_nop 1
v_permlane32_swap_b32 v{d}, v118
s_nop 1
v_add_f32 v{d}, v{d}, v118
v_mov_b32 v118, v{d}
s_nop 1
v_permlane16_swap_b32 v{d}, v118
s_nop 1
v_add_f32 v{d}, v{d}, v118""")
    A(f"""v_bfe_u32 v113, v0, 4, 1
v_cmp_eq_u32 vcc, 1, v113
v_cndmask_b32 v148, v144, v148, vcc
v_cndmask_b32 v117, v116, v117, vcc
v_mul_f32 v144, 0x3acccccd, v148
v_mul_f32 v148, 0x3acccccd, v117
v_fma_f32 v148, -v144, v144, v148
v_max_f32 v148, 0, v148
v_add_f32 v145, 0x3727c5ac, v148
v_sub_f32 v152, 0, v144
v_cvt_pk_bf16_f32 v153, v152, v152
v_and_b32 v153, 0xffff0000, v153
v_sub_f32 v153, v152, v153
v_cvt_pk_bf16_f32 v152, v152, v153
v_cmp_gt_u32 vcc, 32, v0
v_cndmask_b32 v152, 0, v152, vcc
v_mov_b32 v153, v152
v_rsq_f32 v154, v145
s_lshl_b32 s52, s28, 9
s_add_u32 s52, s52, {MF}
v_lshlrev_b32 v155, 3, v0
v_add_u32 v155, s52, v155
ds_write_b64 v155, v[152:153]
s_lshl_b32 s52, s28, 7
s_add_u32 s52, s52, {RS}
v_and_b32 v156, 31, v0
v_lshlrev_b32 v155, 2, v156
v_add_u32 v155, s52, v155
v_mul_f32 v157, 0xbfb8aa3b, v154
ds_write_b32 v155, v154
ds_write_b32 v155, v157 offset:{NL - RS}
ds_write_b32 v155, v145 offset:{IR - RS}
s_waitcnt lgkmcnt(0)""")
    lds_add1(A, S_TAB, 156, 157)
    P.stamp(1)
    for r in range(B_CS, B_CS + 12): A(f"v_mov_b32 v{r}, 0")
    def w_reads(F, k16):
        return [[f"ds_read_b64_tr_b16 v[{F+8+4*n+2*hf}:{F+9+4*n+2*hf}], v6 offset:{k16*3072 + hf*768 + n*32}" for hf in range(2)] for n in range(3)]
    A(f"""s_mov_b32 s61, 0
s_mov_b32 s62, 0x4000
s_mov_b32 s64, 2
s_mov_b32 s67, 0
s_mov_b32 s68, {(-5*WSL) & 0xffffffff}
s_mov_b32 s70, 22""")
    lds_spin_ge(A, "L_B_W20", 9, 8, 21)
    P.stamp(2)
    trace(A, 20)
    sub = Asm()
    slow = consumer_loop(sub, "L_B_LOOP", 10, B_SETS, B_D, B_ACC, 3, False, w_reads, 1, B_CS, 6, WSL, 40)
    pre_reads(A, B_SETS, B_D, 3, w_reads, 1, 6, WSL, "L_B", 21)
    A.lines += sub.lines
    A("s_branch L_B_LOOPD")
    n0 = len(sub.lines); slow(); A.lines += sub.lines[n0:]
    A.label("L_B_LOOPD")
    P.stamp(3)
    trace(A, 40)
    A("s_nop 7\ns_waitcnt lgkmcnt(0)")
    cs_partials(A, B_CS, 3, CSPB)
    lds_add1(A, S_TABB, 2, 3)
    A(f"v_mov_b32 v8, {SYNC + S_TABB}")
    lds_spin_ge(A, "L_B_TAB", 9, 8, 4)
    mf_frags(A, 112)
    cs_frags(A, 120, 3, CSPB)
    A(f"""v_and_b32 v4, 31, v0
v_lshrrev_b32 v5, 5, v0
s_lshl_b32 s52, s29, 8
s_add_u32 s52, s52, {NL}
v_lshlrev_b32 v3, 2, v4
v_add_u32 v3, s52, v3
ds_read_b32 v132, v3
ds_read_b32 v133, v3 offset:128
ds_read_b32 v134, v3 offset:{IR - NL}
ds_read_b32 v135, v3 offset:{IR - NL + 128}
s_waitcnt lgkmcnt(0)""")
    for m in range(2):
        for n in range(3):
            a = B_ACC + 16*(m*3 + n)
            A(f"v_mfma_f32_32x32x16_bf16 v[{a}:{a+15}], v[{120+4*n}:{123+4*n}], v[{112+4*m}:{115+4*m}], v[{a}:{a+15}]")
    A(f"""v_bfe_u32 v6, v0, 4, 1
v_mul_u32_u24 v6, {H_TS}, v6
v_lshl_add_u32 v6, v5, 8, v6
v_and_b32 v7, 15, v0
v_lshl_add_u32 v6, v7, 4, v6
s_lshl_b32 s52, s25, 3
s_lshl_b32 s53, s29, 2
s_add_u32 s52, s52, s53
s_mul_i32 s52, s52, {H_TS}
s_mul_i32 s53, s26, 6
s_mul_i32 s54, s30, 3
s_add_u32 s53, s53, s54
s_lshl_b32 s53, s53, 9
s_add_u32 s52, s52, s53
s_add_u32 s56, s52, {H_OFF}
s_nop 4""")
    for m in range(2):
        for n in range(3):
            a = B_ACC + 16*(m*3 + n)
            t = 136 + 12*((m*3+n) % 2)
            for e in range(8): A(f"v_mul_f32 v{t+e}, v{132+m}, v{a+e}")
            for e in range(8): A(f"v_exp_f32 v{t+e}, v{t+e}")
            for e in range(8): A(f"v_mul_f32 v{a+e}, v{a+e}, v{a+8+e}")
            for e in range(8): A(f"v_fma_f32 v{t+e}, v{t+e}, v{134+m}, v{134+m}")
            for e in range(8): A(f"v_rcp_f32 v{t+e}, v{t+e}")
            A(f"s_add_u32 s52, s56, {2*m*H_TS + n*512}")
            for e in range(8): A(f"v_mul_f32 v{a+e}, v{a+e}, v{t+e}")
            for e in range(4): A(f"v_cvt_pk_bf16_f32 v{t+8+e}, v{a+2*e}, v{a+2*e+1}")
            A(f"buffer_store_dwordx4 v[{t+8}:{t+11}], v6, s[32:35], s52 offen sc1")
    P.stamp(4)
    trace(A, 41)
```

```python
import sys, os
sys.path.insert(0, 'g2')
from mlib import *
import p1, attn, k23
PROFK = int(os.environ.get("PROFK", "1"))
def build(out):
    A = Asm()
    kernel_begin(A, NAME)
    P = Prof(A, PROFK == 1)
    p1.entry(A, P)
    p1.role_p_p1(A, P)
    trace_flush(A); P.flush(2); A("s_endpgm")
    A.label("L_ROLE_A")
    p1.role_a_p1(A, P)
    trace_flush(A); P.flush(4); A("s_endpgm")
    A.label("L_ROLE_B")
    p1.role_b_p1(A, P)
    P.stamp(5); trace_flush(A); P.flush(6)
    A.label("L_END")
    A("s_endpgm")
    kernel_begin(A, "attn_kernel")
    k23.k2(A, Prof(A, PROFK == 2))
    kernel_begin(A, "fin_kernel")
    k23.k3(A, Prof(A, PROFK == 3))
    hdr = HEADER
    hdr += f"; @launch kernel={NAME} grid=(256,1,1) block=(768,1,1) lds={LDS_TOTAL}\n"
    hdr += f"; @launch kernel=attn_kernel grid=(256,1,1) block=(768,1,1) lds={k23.K2_LDS}\n"
    hdr += f"; @launch kernel=fin_kernel grid=(256,1,1) block=(512,1,1) lds={k23.K3_LDS}\n"
    s = hdr + '.amdgcn_target "amdgcn-amd-amdhsa--gfx950"\n.text\n' + A.text() + '.section .rodata,"a"\n' + kernel_desc(NAME, 168) + kernel_desc("attn_kernel", 168) + kernel_desc("fin_kernel", 216)
    open(out, 'w').write(s)
if __name__ == "__main__":
    build(sys.argv[1])
```

```python
import os
from asmlib import Asm, srd, kernel_begin, kernel_desc, HEADER

NAME = "recurrent_scan__mha_block__glu_gated_swiglu__prompt_kernel"
STAT_OFF = 0
CNT_OFF = 0
CS_OFF   = 16384
QK_OFF   = 131072
QK_OS    = 32768
VT_OFF   = QK_OFF + 160*QK_OS
VT_GS    = 20480
H_OFF    = VT_OFF + 128*VT_GS
H_TS     = 49152
O_OFF    = H_OFF + 128*H_TS
O_TS     = 80*256
WI_OFF   = O_OFF + 128*O_TS
WI_NS    = 68*5120
WS_USED  = WI_OFF + 8*WI_NS
XR   = 0
WR   = 65536
WSL  = 12352
QSL  = 8192
NQS  = 9
GREG = 6176
NG5 = int(os.environ.get('NG5','1'))
MF   = 151936 if NG5 else 139648
CSPA = MF + 2048
CSPB = CSPA + 1024
SYNC = CSPB + 1536
JUNK = SYNC + 128
RS   = JUNK + 256
NL   = RS + 512
IR   = NL + 512
SCR  = 16384 if NG5 else 148480
LDS_TOTAL = 163840
assert IR + 512 <= (LDS_TOTAL if NG5 else SCR)
S_FULL = 0; S_FREEA = 16; S_FREEB = 32; S_TAB = 48; S_TABB = 52; S_QCNT = 56; S_QSIG = 60
S_HCNT = 64; S_HSIG = 68; S_QRDY = 72; S_HRDY = 76; S_OCNT = 80; S_ORDY = 84; S_MRG = 88; S_PRED = 104; S_WO = 108
LSPIN = 200000

PROF = int(os.environ.get("PROF", "0"))
PROF_OFF = 64 << 20
class Prof:
    def __init__(self, A, on=True):
        self.A, self.n, self.on = A, 0, on
    def stamp(self, idx=None):
        if not (PROF and self.on): return
        A = self.A
        if idx is None: idx = self.n
        assert idx < 9
        if idx == 0:
            A("s_memrealtime s[98:99]")
        A(f"s_memtime s[{80+2*idx}:{81+2*idx}]")
        A("s_waitcnt lgkmcnt(0)")
        self.n = idx + 1
    def flush(self, n, vd=2, vt=1):
        if not (PROF and self.on): return
        A = self.A
        A("s_memrealtime s[64:65]")
        A("s_waitcnt vmcnt(0) lgkmcnt(0)")
        A(f"s_add_u32 s68, s22, {PROF_OFF}")
        A("s_addc_u32 s69, s23, 0")
        A("s_and_b32 s69, s69, 0xffff")
        A(f"s_mov_b32 s70, {256*16*64}")
        A("s_mov_b32 s71, 0x00020000")
        A(f"v_mov_b32 v{vd}, s98")
        A(f"v_mov_b32 v{vd+1}, s64")
        for i in range(1, 14):
            if i in (7, 8):
                A(f"v_mov_b32 v{vd+1+i}, s{80+2*i}")
            elif i < n:
                A(f"s_sub_u32 s66, s{80+2*i}, s80")
                A(f"v_mov_b32 v{vd+1+i}, s66")
            else:
                A(f"v_mov_b32 v{vd+1+i}, 0")
        A(f"v_mov_b32 v{vd+15}, 1")
        A("s_lshl_b32 s66, s2, 4")
        A("s_add_u32 s66, s66, s24")
        A("s_lshl_b32 s66, s66, 6")
        A(f"v_mov_b32 v{vt}, 0")
        A("s_mov_b64 exec, 1")
        for i in range(4):
            A(f"buffer_store_dwordx4 v[{vd+4*i}:{vd+4*i+3}], v{vt}, s[68:71], s66 offen offset:{16*i}")
        A("s_waitcnt vmcnt(0)")
        A("s_mov_b64 exec, -1")

TR_OFF = PROF_OFF + (1 << 20)
TRV = 167
TRACE = int(os.environ.get("TRACE", "0"))
def trace_init(A):
    if TRACE: A(f"v_mov_b32 v{TRV}, 0")
def trace(A, idx, nowait=False):
    if not TRACE: return
    A("s_memtime s[100:101]")
    A("s_waitcnt lgkmcnt(0)")
    A("s_sub_u32 s100, s100, s80")
    A(f"v_writelane_b32 v{TRV}, s100, {idx}")
def trace_dyn(A, base, sreg):
    if not TRACE: return
    A("s_memtime s[100:101]")
    A("s_waitcnt lgkmcnt(0)")
    A("s_sub_u32 s100, s100, s80")
    A(f"s_add_u32 m0, {sreg}, {base}")
    A(f"v_writelane_b32 v{TRV}, s100, m0")
def trace_flush(A, vt=1):
    if not TRACE: return
    A(f"s_add_u32 s68, s22, {TR_OFF}")
    A("s_addc_u32 s69, s23, 0")
    A("s_and_b32 s69, s69, 0xffff")
    A(f"s_mov_b32 s70, {256*16*256}")
    A("s_mov_b32 s71, 0x00020000")
    A("s_lshl_b32 s66, s2, 4")
    A("s_add_u32 s66, s66, s24")
    A("s_lshl_b32 s66, s66, 8")
    A(f"v_lshlrev_b32 v{vt}, 2, v0")
    A(f"buffer_store_dword v{TRV}, v{vt}, s[68:71], s66 offen")
    A("s_waitcnt vmcnt(0)")

SPIN_MAX = 60000
def poll_flags(A, lbl, vtmp, vaddr, mask, scnt="s60"):
    A(f"s_mov_b32 {scnt}, 0")
    A.label(lbl)
    A(f"buffer_load_dword v{vtmp}, v{vaddr}, s[36:39], 0 offen sc1")
    A("s_waitcnt vmcnt(0)")
    if isinstance(mask, tuple):
        A(f"v_and_b32 v{vtmp}, v{mask[1]}, v{vtmp}")
        A(f"v_cmp_ne_u32 vcc, v{mask[1]}, v{vtmp}")
    else:
        A(f"v_and_b32 v{vtmp}, {hex(mask)}, v{vtmp}")
        A(f"v_cmp_ne_u32 vcc, {hex(mask)}, v{vtmp}")
    A(f"s_cbranch_vccz {lbl}_ok")
    A(f"s_add_u32 {scnt}, {scnt}, 1")
    A(f"s_cmp_lt_u32 {scnt}, {SPIN_MAX}")
    A(f"s_cbranch_scc0 {lbl}_ok")
    A(f"s_sleep {int(os.environ.get('PSLEEP', '2'))}")
    A(f"s_branch {lbl}")
    A.label(lbl + "_ok")

def signal(A, val, vtmp0, vtmp1):
    A(f"v_mov_b32 v{vtmp0}, {val}")
    A(f"v_mov_b32 v{vtmp1}, s2")
    A("s_mov_b64 exec, 1")
    A(f"buffer_store_byte v{vtmp0}, v{vtmp1}, s[36:39], 0 offen sc1")
    A("s_mov_b64 exec, -1")

class Lgk:
    def __init__(self, A, init=()):
        self.A, self.q = A, list(init)
    def issue(self, instr, tag):
        self.A(instr); self.q.append(tag)
    def need(self, *tags):
        idx = [i for i, t in enumerate(self.q) if t in tags]
        if not idx: return
        last = max(idx)
        n = min(len(self.q) - 1 - last, 15)
        self.A(f"s_waitcnt lgkmcnt({n})")
        self.q = self.q[len(self.q) - n:] if n else []

def lds_spin_ge(A, lbl, vdst, vaddr, need, scnt="s71", sleep=1):
    A(f"s_mov_b32 {scnt}, 0")
    A.label(lbl)
    A(f"ds_read_b32 v{vdst}, v{vaddr}")
    A("s_waitcnt lgkmcnt(0)")
    A(f"v_cmp_gt_u32 vcc, {need}, v{vdst}")
    A(f"s_cbranch_vccz {lbl}_ok")
    A(f"s_add_u32 {scnt}, {scnt}, 1")
    A(f"s_cmp_lt_u32 {scnt}, {LSPIN}")
    A(f"s_cbranch_scc0 {lbl}_ok")
    if sleep: A(f"s_sleep {sleep}")
    A(f"s_branch {lbl}")
    A.label(lbl + "_ok")

def lds_count(A, lbl_not_last, off, last, va, vb, vc, sres="s52"):
    A(f"v_mov_b32 v{va}, {SYNC + off}")
    A(f"v_mov_b32 v{vb}, 1")
    A("s_mov_b64 exec, 1")
    A(f"ds_add_rtn_u32 v{vc}, v{va}, v{vb}")
    A("s_waitcnt lgkmcnt(0)")
    A("s_mov_b64 exec, -1")
    A(f"v_readfirstlane_b32 {sres}, v{vc}")
    A(f"s_cmp_eq_u32 {sres}, {last}")
    A(f"s_cbranch_scc0 {lbl_not_last}")

def lds_add1(A, off, va, vb):
    A(f"v_mov_b32 v{va}, {SYNC + off}")
    A(f"v_mov_b32 v{vb}, 1")
    A("s_mov_b64 exec, 1")
    A(f"ds_add_u32 v{va}, v{vb}")
    A("s_mov_b64 exec, -1")

def lds_set(A, off, val, va, vb):
    A(f"v_mov_b32 v{va}, {SYNC + off}")
    A(f"v_mov_b32 v{vb}, {val}")
    A("s_mov_b64 exec, 1")
    A(f"ds_write_b32 v{va}, v{vb}")
    A("s_mov_b64 exec, -1")
```

```python
import sys, os
sys.path.insert(0, 'g2')
from mlib import *
import attn, k23
if os.environ.get("P1V", "b") == "b": import p1b as p1
else: import p1
PROFK = int(os.environ.get("PROFK", "1"))
def build(out):
    A = Asm()
    kernel_begin(A, NAME)
    P = Prof(A, PROFK == 1)
    p1.entry(A, P)
    p1.role_p_p1(A, P)
    trace_flush(A); P.flush(4); A("s_endpgm")
    A.label("L_ROLE_A")
    p1.role_a_p1(A, P)
    trace_flush(A); P.flush(4); A("s_endpgm")
    A.label("L_ROLE_B")
    p1.role_b_p1(A, P)
    P.stamp(5); trace_flush(A); P.flush(6)
    A.label("L_END")
    A("s_endpgm")
    kernel_begin(A, "attn_kernel")
    k23.k2(A, Prof(A, PROFK == 2))
    kernel_begin(A, "fin_kernel")
    k23.k3(A, Prof(A, PROFK == 3))
    hdr = HEADER
    hdr += f"; @launch kernel={NAME} grid=(256,1,1) block=(768,1,1) lds={LDS_TOTAL}\n"
    hdr += f"; @launch kernel=attn_kernel grid=(256,1,1) block=(768,1,1) lds={k23.K2_LDS}\n"
    hdr += f"; @launch kernel=fin_kernel grid=(256,1,1) block=(512,1,1) lds={k23.K3_LDS}\n"
    s = hdr + '.amdgcn_target "amdgcn-amd-amdhsa--gfx950"\n.text\n' + A.text() + '.section .rodata,"a"\n' + kernel_desc(NAME, 168) + kernel_desc("attn_kernel", 168) + kernel_desc("fin_kernel", 216)
    open(out, 'w').write(s)
if __name__ == "__main__":
    build(sys.argv[1])
```

```python
from mlib import *
import attn
G_OFF = WI_OFF + 8*WI_NS
G_SZ = 256*4*5120
WS2 = G_OFF + G_SZ
RED = 0
FUSE = int(os.environ.get('FUSE','1'))
K2_LDS = 65536 + 8*3328 + 256 + (8*5120 if FUSE else 0)
WO2 = 65536 + 8*3328 + 256
GSPIN = 8192
SENT = int(os.environ.get('SENT','1'))
K2_SYNC = 65536 + 8*3328
def common_entry(A, P, end, nwaves_note=""):
    A(f"s_cmp_ge_u32 s2, 256\ns_cbranch_scc1 {end}")
    P.stamp(0)
    A("""s_load_dwordx4 s[4:7], s[0:1], 0
s_load_dwordx4 s[16:19], s[0:1], 48
s_load_dwordx4 s[20:23], s[0:1], 64
v_lshrrev_b32 v1, 6, v0
v_and_b32 v0, 63, v0
s_nop 0
v_readfirstlane_b32 s24, v1""")

def k2(A, P, END="L_K2_END"):
    import mlib
    common_entry(A, P, END)
    A(f"""v_lshlrev_b32 v2, 2, v0
v_add_u32 v2, {K2_SYNC}, v2
v_mov_b32 v3, 0
ds_write_b32 v2, v3
s_and_b32 s28, s24, 3
s_waitcnt lgkmcnt(0)""")
    srd(A, 32, 22, 23, WS2)
    A("s_barrier")
    A("s_cmp_lt_u32 s24, 8\ns_cbranch_scc0 L_K2_P")
    attn.attention(A, P)
    if FUSE and SENT:
        A(f"""v_mov_b32 v8, {K2_SYNC + 48}
v_mov_b32 v9, 1
s_mov_b64 exec, 1
ds_add_u32 v8, v9
s_mov_b64 exec, -1""")
    elif FUSE:
        A(f"""s_waitcnt vmcnt(0)
v_mov_b32 v8, {K2_SYNC + 48}
v_mov_b32 v9, 1
s_mov_b64 exec, 1
ds_add_rtn_u32 v10, v8, v9
s_waitcnt lgkmcnt(0)
v_readfirstlane_b32 s52, v10
s_cmp_eq_u32 s52, 7
s_cbranch_scc0 L_K2_NOSIG
s_lshl_b32 s52, s41, 8
s_add_u32 s52, s52, {CNT_OFF}
v_mov_b32 v8, 0
buffer_atomic_add v9, v8, s[32:35], s52 offen sc1
L_K2_NOSIG:
s_mov_b64 exec, -1""")
    P.flush(5, vd=56)
    A("s_endpgm")
    A.label("L_K2_P")
    ACC = 8; SET = [88, 124]
    A(f"""s_and_b32 s52, s2, 7
s_bfe_u32 s53, s2, 0x20003
s_lshl_b32 s53, s53, 3
s_add_u32 s40, s52, s53
s_lshr_b32 s41, s2, 5
s_mul_i32 s42, s41, {WI_NS}
s_add_u32 s42, s42, {WI_OFF}
s_mul_i32 s52, s28, {12*5120}
s_add_u32 s44, s42, s52
s_add_u32 s45, s44, 4096
s_mul_i32 s46, s40, {4*H_TS}
s_mul_i32 s52, s28, {12*1024}
s_add_u32 s46, s46, s52
s_add_u32 s46, s46, {H_OFF}
v_lshlrev_b32 v2, 4, v0""")
    for m in range(1, 4): A(f"v_add_u32 v{2+m}, {m*H_TS}, v2")
    def ldw(s, cb):
        F = SET[s % 2] + 4*cb
        if cb < 4: A(f"buffer_load_dwordx4 v[{F}:{F+3}], v2, s[32:35], s44 offen offset:{1024*cb}")
        else: A(f"buffer_load_dwordx4 v[{F}:{F+3}], v2, s[32:35], s45 offen")
    def ldh(s, m):
        F = SET[s % 2] + 20 + 4*m
        A(f"buffer_load_dwordx4 v[{F}:{F+3}], v{2+m}, s[32:35], s46 offen")
    def adv():
        A("s_add_u32 s44, s44, 5120\ns_add_u32 s45, s45, 5120\ns_add_u32 s46, s46, 1024")
    q = []
    for s in range(2):
        for m in range(4): ldh(s, m); q.append(("H", s))
        for cb in range(5): ldw(s, cb); q.append(("W", s, cb))
        adv()
    for r in range(ACC, ACC + 80): A(f"v_mov_b32 v{r}, 0")
    def need(*tags):
        last = max(i for i, t in enumerate(q) if t in tags)
        A(f"s_waitcnt vmcnt({len(q) - 1 - last})")
    for s in range(12):
        F = SET[s % 2]
        for cb in range(5):
            need(("H", s), ("W", s, cb))
            for m in range(4):
                a = ACC + 4*(m*5 + cb)
                A(f"v_mfma_f32_16x16x32_bf16 v[{a}:{a+3}], v[{F+4*cb}:{F+4*cb+3}], v[{F+20+4*m}:{F+23+4*m}], v[{a}:{a+3}]")
            if s + 2 < 12 and cb > 0:
                ldw(s + 2, cb - 1); q.append(("W", s + 2, cb - 1))
        if s + 2 < 12:
            ldw(s + 2, 4); q.append(("W", s + 2, 4))
            for m in range(4): ldh(s + 2, m); q.append(("H", s + 2))
            adv()
    A("s_nop 7")
    P.stamp(1)
    A("v_lshlrev_b32 v2, 4, v0")
    G = 88
    def wo_dma(first, cnt, ldsbase):
        A(f"""s_mul_i32 s52, s28, {cnt*5120}
s_add_u32 s53, s52, s42
s_add_u32 s53, s53, {(48 + first)*5120}
s_add_u32 s52, s52, {ldsbase}""")
        for i in range(cnt):
            A("s_mov_b32 m0, s52\ns_nop 0")
            for cb in range(4): A(f"buffer_load_dwordx4 v2, s[32:35], s53 offen offset:{1024*cb} lds")
            A("s_add_u32 m0, s52, 4096\ns_add_u32 s54, s53, 4096")
            A("buffer_load_dwordx4 v2, s[32:35], s54 offen lds")
            A("s_add_u32 s52, s52, 5120\ns_add_u32 s53, s53, 5120")
    def lds_inc(off):
        A(f"""v_mov_b32 v6, {K2_SYNC + off}
v_mov_b32 v7, 1
s_mov_b64 exec, 1
ds_add_u32 v6, v7
s_mov_b64 exec, -1""")
    if FUSE: wo_dma(12, 2, WO2)
    for m in range(4):
        A(f"s_cmp_eq_u32 s28, {m}\ns_cbranch_scc1 L_P3_OWN{m}")
        A(f"""s_sub_u32 s52, s28, {m}
s_and_b32 s52, s52, 3
s_sub_u32 s52, s52, 1
s_mul_i32 s52, s52, 5120
s_add_u32 s52, s52, {RED + m*15360}
v_add_u32 v3, s52, v2""")
        for cb in range(5):
            a = ACC + 4*(m*5 + cb)
            A(f"ds_write_b128 v3, v[{a}:{a+3}] offset:{1024*cb}")
        A(f"s_branch L_P3_NXT{m}")
        A.label(f"L_P3_OWN{m}")
        for r in range(20): A(f"v_mov_b32 v{G+r}, v{ACC + 20*m + r}")
        A.label(f"L_P3_NXT{m}")
    A("s_waitcnt lgkmcnt(0)")
    lds_inc(32)
    lds_spin_ge(A, "L_P3_R1", 7, 6, 4)
    A(f"s_mul_i32 s52, s28, 15360\ns_add_u32 s52, s52, {RED}\nv_add_u32 v3, s52, v2")
    for sl in range(3):
        for cb in range(5):
            a = 8 + 20*sl + 4*cb
            A(f"ds_read_b128 v[{a}:{a+3}], v3 offset:{sl*5120 + 1024*cb}")
    A(f"""s_lshl_b32 s52, s40, 3
s_add_u32 s52, s52, s41
s_lshl_b32 s52, s52, 2
s_add_u32 s52, s52, s28
s_mul_i32 s52, s52, 5120
s_add_u32 s52, s52, {G_OFF}
s_add_u32 s53, s52, 4096
s_waitcnt lgkmcnt(0)""")
    if FUSE:
        lds_inc(36)
        lds_spin_ge(A, "L_P3_R2", 7, 6, 4)
        wo_dma(0, 3, 0)
        srd(A, 48, 4, 5, 2048*1280)
        A(f"""s_lshl_b32 s53, s40, 6
s_lshl_b32 s54, s28, 4
s_add_u32 s53, s53, s54
s_mul_i32 s53, s53, 1280
s_mul_i32 s54, s41, 160
s_add_u32 s47, s53, s54
v_and_b32 v118, 15, v0
v_mul_u32_u24 v118, 1280, v118
v_lshrrev_b32 v119, 4, v0
v_lshl_add_u32 v118, v119, 3, v118""")
        for c in range(5): A(f"buffer_load_dwordx2 v[{108+2*c}:{109+2*c}], v118, s[48:51], s47 offen offset:{32*c}")
    for r in range(20):
        A(f"v_add_f32 v{G+r}, v{G+r}, v{8+r}")
        A(f"v_add_f32 v{28+r}, v{28+r}, v{48+r}")
    for r in range(20): A(f"v_add_f32 v{G+r}, v{G+r}, v{28+r}")
    for r in range(20): A(f"v_mul_f32 v{8+r}, 0xbfb8aa3b, v{G+r}")
    for r in range(20): A(f"v_exp_f32 v{8+r}, v{8+r}")
    for r in range(20): A(f"v_add_f32 v{8+r}, 1.0, v{8+r}")
    for r in range(20): A(f"v_rcp_f32 v{8+r}, v{8+r}")
    for r in range(20): A(f"v_mul_f32 v{G+r}, v{G+r}, v{8+r}")
    if not FUSE:
        for cb in range(4): A(f"buffer_store_dwordx4 v[{G+4*cb}:{G+4*cb+3}], v2, s[32:35], s52 offen offset:{1024*cb} sc1")
        A(f"buffer_store_dwordx4 v[{G+16}:{G+19}], v2, s[32:35], s53 offen sc1")
    P.stamp(2)
    if FUSE:
        A("s_waitcnt vmcnt(0)")
        lds_inc(40)
        if SENT:
            A(f"v_mov_b32 v6, {K2_SYNC + 40}")
            lds_spin_ge(A, "L_P3_R3", 7, 6, 4)
            A(f"v_mov_b32 v6, {K2_SYNC + 48}")
            lds_spin_ge(A, "L_P3_R4", 7, 6, 8)
        else:
            A(f"""s_cmp_eq_u32 s28, 0
    s_cbranch_scc0 L_P3_NOPOLL
    s_lshr_b32 s52, s40, 2
    s_lshl_b32 s52, s52, 8
    s_add_u32 s52, s52, {CNT_OFF}
    v_mov_b32 v3, 0
    s_mov_b32 s55, 0
    L_P3_POLL:
    buffer_load_dword v4, v3, s[32:35], s52 offen sc1
    s_waitcnt vmcnt(0)
    v_cmp_gt_u32 vcc, 32, v4
    s_cbranch_vccz L_P3_POLLD
    s_add_u32 s55, s55, 1
    s_cmp_lt_u32 s55, {GSPIN}
    s_cbranch_scc0 L_P3_POLLD
    s_sleep 4
    s_branch L_P3_POLL
    L_P3_POLLD:""")
            lds_inc(44)
            A.label("L_P3_NOPOLL")
            A(f"v_mov_b32 v6, {K2_SYNC + 44}")
            lds_spin_ge(A, "L_P3_R4", 7, 6, 1)
        P.stamp(3)
        OF = 8; AC = 120; WB = [140, 0]
        A(f"""s_lshl_b32 s52, s40, 2
s_add_u32 s52, s52, s28
s_mul_i32 s52, s52, {O_TS}
s_add_u32 s44, s52, {O_OFF}""")
        if SENT:
            A("s_mov_b32 s55, 0")
            A.label("L_P3_TRY")
            A("s_mov_b32 s45, s44")
            for s in range(20):
                if s and s % 4 == 0: A("s_add_u32 s45, s45, 4096")
                A(f"buffer_load_dwordx4 v[{OF+4*s}:{OF+4*s+3}], v2, s[32:35], s45 offen offset:{1024*(s % 4)} sc1")
            for s in range(20):
                if s % 2 == 0: A(f"s_waitcnt vmcnt({18 - s})")
                r = OF + 4*s
                if s == 0:
                    A(f"v_max3_u32 v4, v{r}, v{r+1}, v{r+2}\nv_max_u32 v5, v{r+3}, v{r+3}")
                else:
                    A(f"v_max3_u32 v4, v4, v{r}, v{r+1}\nv_max3_u32 v5, v5, v{r+2}, v{r+3}")
            A(f"""v_max_u32 v4, v4, v5
v_cmp_eq_u32 vcc, -1, v4
s_cbranch_vccz L_P3_GOT
s_add_u32 s55, s55, 1
s_cmp_lt_u32 s55, {GSPIN}
s_cbranch_scc1 L_P3_TRY
L_P3_GOT:""")
            if PROF: A("s_mov_b32 s96, s55")
            P.stamp(4)
        else:
            for s in range(20):
                if s and s % 4 == 0: A("s_add_u32 s44, s44, 4096")
                A(f"buffer_load_dwordx4 v[{OF+4*s}:{OF+4*s+3}], v2, s[32:35], s44 offen offset:{1024*(s % 4)} sc1")
            A(f"v_mov_b32 v6, {K2_SYNC + 40}")
            lds_spin_ge(A, "L_P3_R3", 7, 6, 4)
        A(f"v_add_u32 v3, {WO2}, v2")
        for r in range(AC, AC + 20): A(f"v_mov_b32 v{r}, 0")
        L = Lgk(A)
        NWR = 7
        seq = [(s, cb) for s in range(20) for cb in range(5)]
        def wread(i):
            s, cb = seq[i]; F = 140 + 4*(i % NWR)
            if s < 12: L.issue(f"ds_read_b128 v[{F}:{F+3}], v2 offset:{s*5120 + cb*1024}", i)
            else: L.issue(f"ds_read_b128 v[{F}:{F+3}], v3 offset:{(s-12)*5120 + cb*1024}", i)
        for i in range(NWR - 1): wread(i)
        for i, (s, cb) in enumerate(seq):
            if cb == 0 and not SENT: A(f"s_waitcnt vmcnt({19 - s})")
            L.need(i)
            F = 140 + 4*(i % NWR)
            A(f"v_mfma_f32_16x16x32_bf16 v[{AC+4*cb}:{AC+4*cb+3}], v[{F}:{F+3}], v[{OF+4*s}:{OF+4*s+3}], v[{AC+4*cb}:{AC+4*cb+3}]")
            if i + NWR - 1 < len(seq): wread(i + NWR - 1)
        P.stamp(5 if SENT else 4)
        srd(A, 48, 18, 19, 2048*1280)
        for c in range(5):
            for k in range(2):
                A(f"v_lshlrev_b32 v{8+4*c+2*k}, 16, v{108+2*c+k}")
                A(f"v_and_b32 v{9+4*c+2*k}, 0xffff0000, v{108+2*c+k}")
        A("s_nop 7")
        for r in range(20): A(f"v_fma_f32 v{8+r}, v{AC+r}, v{G+r}, v{8+r}")
        for c in range(5):
            for k in range(2): A(f"v_cvt_pk_bf16_f32 v{28+2*c+k}, v{8+4*c+2*k}, v{9+4*c+2*k}")
        for c in range(5): A(f"buffer_store_dwordx2 v[{28+2*c}:{29+2*c}], v118, s[48:51], s47 offen offset:{32*c}")
        P.stamp(6 if SENT else 5)
    P.flush(7 if FUSE else 3, vd=56)
    A.label(END)
    A("s_endpgm")

def k3(A, P, END="L_K3_END"):
    common_entry(A, P, END)
    A("s_load_dwordx2 s[8:9], s[0:1], 0")
    A(f"""s_and_b32 s52, s2, 7
s_bfe_u32 s53, s2, 0x20003
s_lshl_b32 s53, s53, 3
s_add_u32 s40, s52, s53
s_lshr_b32 s41, s2, 5
s_and_b32 s28, s24, 1
s_lshr_b32 s29, s24, 1
v_lshlrev_b32 v2, 4, v0
s_mul_i32 s42, s41, {WI_NS}
s_mul_i32 s52, s29, {5*5120}
s_add_u32 s42, s42, s52
s_add_u32 s42, s42, {WI_OFF + 48*5120}
s_lshl_b32 s52, s40, 2
s_lshl_b32 s53, s28, 1
s_add_u32 s52, s52, s53
s_mul_i32 s52, s52, {O_TS}
s_mul_i32 s53, s29, 5120
s_add_u32 s52, s52, s53
s_add_u32 s44, s52, {O_OFF}
v_add_u32 v3, 4096, v2
v_add_u32 v4, {O_TS}, v2
v_add_u32 v5, {O_TS + 4096}, v2
s_waitcnt lgkmcnt(0)""")
    srd(A, 32, 22, 23, WS2)
    W = 16; OF = 116; ACC = 156; GR = 196; XR_ = 206
    for s in range(5):
        for m in range(2):
            F = OF + 4*(2*s + m)
            r = (2 + 2*m) if s < 4 else (3 + 2*m)
            A(f"buffer_load_dwordx4 v[{F}:{F+3}], v{r}, s[32:35], s44 offen offset:{1024*(s % 4)}")
        for cb in range(5):
            F = W + 20*s + 4*cb
            if cb < 4: A(f"buffer_load_dwordx4 v[{F}:{F+3}], v2, s[32:35], s42 offen offset:{1024*cb}")
            else: A(f"buffer_load_dwordx4 v[{F}:{F+3}], v3, s[32:35], s42 offen")
        A("s_add_u32 s42, s42, 5120")
    srd(A, 48, 4, 5, 2048*1280)
    A(f"""s_lshr_b32 s30, s24, 1
s_and_b32 s31, s24, 1
s_mul_i32 s31, s31, 3
s_lshl_b32 s52, s40, 3
s_add_u32 s52, s52, s41
s_lshl_b32 s52, s52, 2
s_add_u32 s52, s52, s30
s_mul_i32 s52, s52, 5120
s_lshl_b32 s53, s31, 10
s_add_u32 s52, s52, s53
s_add_u32 s52, s52, {G_OFF}
s_lshl_b32 s53, s40, 6
s_lshl_b32 s54, s30, 4
s_add_u32 s53, s53, s54
s_mul_i32 s53, s53, 1280
s_mul_i32 s54, s41, 160
s_add_u32 s53, s53, s54
s_lshl_b32 s54, s31, 5
s_add_u32 s47, s53, s54
v_and_b32 v6, 15, v0
v_mul_u32_u24 v6, 1280, v6
v_lshrrev_b32 v7, 4, v0
v_lshl_add_u32 v6, v7, 3, v6""")
    for c in range(3):
        A(f"buffer_load_dwordx4 v[{GR+4*c}:{GR+4*c+3}], v2, s[32:35], s52 offen offset:{1024*c}")
        A(f"buffer_load_dwordx2 v[{208+2*c}:{209+2*c}], v6, s[48:51], s47 offen offset:{32*c}")
    for r in range(ACC, ACC + 40): A(f"v_mov_b32 v{r}, 0")
    P.stamp(1)
    for s in range(5):
        A(f"s_waitcnt vmcnt({6 + 7*(4 - s)})")
        for cb in range(5):
            for m in range(2):
                a = ACC + 20*m + 4*cb
                A(f"v_mfma_f32_16x16x32_bf16 v[{a}:{a+3}], v[{W+20*s+4*cb}:{W+20*s+4*cb+3}], v[{OF+4*(2*s+m)}:{OF+4*(2*s+m)+3}], v[{a}:{a+3}]")
    A(f"""s_lshl_b32 s52, s28, 1
s_mul_i32 s52, s52, {4*5120}
s_mul_i32 s53, s29, 5120
s_add_u32 s52, s52, s53
v_add_u32 v3, s52, v2
s_nop 7""")
    P.stamp(2)
    for m in range(2):
        if m: A(f"v_add_u32 v3, {4*5120}, v3")
        for cb in range(5):
            a = ACC + 20*m + 4*cb
            A(f"ds_write_b128 v3, v[{a}:{a+3}] offset:{1024*cb}")
    A(f"""s_waitcnt lgkmcnt(0)
s_barrier
s_mul_i32 s52, s30, {4*5120}
s_lshl_b32 s53, s31, 10
s_add_u32 s52, s52, s53
v_add_u32 v3, s52, v2""")
    for k in range(4):
        for c in range(3):
            a = 16 + 12*k + 4*c
            A(f"ds_read_b128 v[{a}:{a+3}], v3 offset:{k*5120 + 1024*c}")
    srd(A, 48, 18, 19, 2048*1280)
    A("s_waitcnt vmcnt(0)")
    for c in range(3):
        for k in range(2):
            A(f"v_lshlrev_b32 v{64+4*c+2*k}, 16, v{208+2*c+k}")
            A(f"v_and_b32 v{65+4*c+2*k}, 0xffff0000, v{208+2*c+k}")
    A("s_waitcnt lgkmcnt(0)")
    for r in range(12):
        A(f"v_add_f32 v{16+r}, v{16+r}, v{28+r}")
        A(f"v_add_f32 v{40+r}, v{40+r}, v{52+r}")
    for r in range(12): A(f"v_add_f32 v{16+r}, v{16+r}, v{40+r}")
    for r in range(12): A(f"v_fma_f32 v{16+r}, v{16+r}, v{GR+r}, v{64+r}")
    for c in range(3):
        for k in range(2): A(f"v_cvt_pk_bf16_f32 v{80+2*c+k}, v{16+4*c+2*k}, v{17+4*c+2*k}")
    for c in range(2): A(f"buffer_store_dwordx2 v[{80+2*c}:{81+2*c}], v6, s[48:51], s47 offen offset:{32*c}")
    A("s_cmp_eq_u32 s31, 0\ns_cbranch_scc0 L_K3_SK")
    A("buffer_store_dwordx2 v[84:85], v6, s[48:51], s47 offen offset:64")
    A.label("L_K3_SK")
    P.stamp(3)
    P.flush(4, vd=100)
    A.label(END)
    A("s_endpgm")
K3_LDS = 16*5120 + 1024
```

```python
import sys, os
sys.path.insert(0, 'g2')
from mlib import *
import attn, k23
if os.environ.get("P1V", "b") == "b": import p1b as p1
else: import p1
PROFK = int(os.environ.get("PROFK", "1"))
def build(out):
    A = Asm()
    kernel_begin(A, NAME)
    P = Prof(A, PROFK == 1)
    p1.entry(A, P)
    p1.role_p_p1(A, P)
    trace_flush(A); P.flush(4); A("s_endpgm")
    A.label("L_ROLE_A")
    p1.role_a_p1(A, P)
    trace_flush(A); P.flush(4); A("s_endpgm")
    A.label("L_ROLE_B")
    p1.role_b_p1(A, P)
    P.stamp(5); trace_flush(A); P.flush(6)
    A.label("L_END")
    A("s_endpgm")
    kernel_begin(A, "attn_kernel")
    k23.k2(A, Prof(A, PROFK == 2))
    if not k23.FUSE:
        kernel_begin(A, "fin_kernel")
        k23.k3(A, Prof(A, PROFK == 3))
    hdr = HEADER
    hdr += f"; @launch kernel={NAME} grid=(256,1,1) block=(768,1,1) lds={LDS_TOTAL}\n"
    hdr += f"; @launch kernel=attn_kernel grid=(256,1,1) block=(768,1,1) lds={k23.K2_LDS}\n"
    if not k23.FUSE: hdr += f"; @launch kernel=fin_kernel grid=(256,1,1) block=(512,1,1) lds={k23.K3_LDS}\n"
    s = hdr + '.amdgcn_target "amdgcn-amd-amdhsa--gfx950"\n.text\n' + A.text() + '.section .rodata,"a"\n' + kernel_desc(NAME, 168) + kernel_desc("attn_kernel", 168) + ("" if k23.FUSE else kernel_desc("fin_kernel", 216))
    open(out, 'w').write(s)
if __name__ == "__main__":
    build(sys.argv[1])
```

```python
from mlib import *
import attn
G_OFF = WI_OFF + 8*WI_NS
G_SZ = 256*4*5120
WS2 = G_OFF + G_SZ
RED = 0
FUSE = int(os.environ.get('FUSE','1'))
K2_LDS = 65536 + 8*3328 + 256 + (8*5120 if FUSE else 0)
WO2 = 65536 + 8*3328 + 256
GSPIN = 8192
SENT = int(os.environ.get('SENT','1'))
K2_SYNC = 65536 + 8*3328
def common_entry(A, P, end, nwaves_note=""):
    A(f"s_cmp_ge_u32 s2, 256\ns_cbranch_scc1 {end}")
    P.stamp(0)
    A("""s_load_dwordx4 s[4:7], s[0:1], 0
s_load_dwordx4 s[16:19], s[0:1], 48
s_load_dwordx4 s[20:23], s[0:1], 64
v_lshrrev_b32 v1, 6, v0
v_and_b32 v0, 63, v0
s_nop 0
v_readfirstlane_b32 s24, v1""")

def k2(A, P, END="L_K2_END"):
    import mlib
    common_entry(A, P, END)
    A(f"""v_lshlrev_b32 v2, 2, v0
v_add_u32 v2, {K2_SYNC}, v2
v_mov_b32 v3, 0
ds_write_b32 v2, v3
s_and_b32 s28, s24, 3
s_waitcnt lgkmcnt(0)""")
    srd(A, 32, 22, 23, WS2)
    A("s_cmp_lt_u32 s24, 8\ns_cbranch_scc0 L_K2_P")
    attn.attention(A, P)
    if FUSE and SENT:
        A(f"""v_mov_b32 v8, {K2_SYNC + 48}
v_mov_b32 v9, 1
s_mov_b64 exec, 1
ds_add_u32 v8, v9
s_mov_b64 exec, -1""")
    elif FUSE:
        A(f"""s_waitcnt vmcnt(0)
v_mov_b32 v8, {K2_SYNC + 48}
v_mov_b32 v9, 1
s_mov_b64 exec, 1
ds_add_rtn_u32 v10, v8, v9
s_waitcnt lgkmcnt(0)
v_readfirstlane_b32 s52, v10
s_cmp_eq_u32 s52, 7
s_cbranch_scc0 L_K2_NOSIG
s_lshl_b32 s52, s41, 8
s_add_u32 s52, s52, {CNT_OFF}
v_mov_b32 v8, 0
buffer_atomic_add v9, v8, s[32:35], s52 offen sc1
L_K2_NOSIG:
s_mov_b64 exec, -1""")
    P.flush(5, vd=56)
    A("s_endpgm")
    A.label("L_K2_P")
    A("s_barrier")
    if int(os.environ.get('P2PRIO','0')): A(f"s_setprio {os.environ['P2PRIO']}")
    ACC = 8; SET = [88, 124]
    A(f"""s_and_b32 s52, s2, 7
s_bfe_u32 s53, s2, 0x20003
s_lshl_b32 s53, s53, 3
s_add_u32 s40, s52, s53
s_lshr_b32 s41, s2, 5
s_mul_i32 s42, s41, {WI_NS}
s_add_u32 s42, s42, {WI_OFF}
s_mul_i32 s52, s28, {12*5120}
s_add_u32 s44, s42, s52
s_add_u32 s45, s44, 4096
s_mul_i32 s46, s40, {4*H_TS}
s_mul_i32 s52, s28, {12*1024}
s_add_u32 s46, s46, s52
s_add_u32 s46, s46, {H_OFF}
v_lshlrev_b32 v2, 4, v0""")
    for m in range(1, 4): A(f"v_add_u32 v{2+m}, {m*H_TS}, v2")
    def ldw(s, cb):
        F = SET[s % 2] + 4*cb
        if cb < 4: A(f"buffer_load_dwordx4 v[{F}:{F+3}], v2, s[32:35], s44 offen offset:{1024*cb}")
        else: A(f"buffer_load_dwordx4 v[{F}:{F+3}], v2, s[32:35], s45 offen")
    def ldh(s, m):
        F = SET[s % 2] + 20 + 4*m
        A(f"buffer_load_dwordx4 v[{F}:{F+3}], v{2+m}, s[32:35], s46 offen")
    def adv():
        A("s_add_u32 s44, s44, 5120\ns_add_u32 s45, s45, 5120\ns_add_u32 s46, s46, 1024")
    q = []
    for s in range(2):
        for m in range(4): ldh(s, m); q.append(("H", s))
        for cb in range(5): ldw(s, cb); q.append(("W", s, cb))
        adv()
    for r in range(ACC, ACC + 80): A(f"v_mov_b32 v{r}, 0")
    def need(*tags):
        last = max(i for i, t in enumerate(q) if t in tags)
        A(f"s_waitcnt vmcnt({len(q) - 1 - last})")
    for s in range(12):
        F = SET[s % 2]
        for cb in range(5):
            need(("H", s), ("W", s, cb))
            for m in range(4):
                a = ACC + 4*(m*5 + cb)
                A(f"v_mfma_f32_16x16x32_bf16 v[{a}:{a+3}], v[{F+4*cb}:{F+4*cb+3}], v[{F+20+4*m}:{F+23+4*m}], v[{a}:{a+3}]")
            if s + 2 < 12 and cb > 0:
                ldw(s + 2, cb - 1); q.append(("W", s + 2, cb - 1))
        if s + 2 < 12:
            ldw(s + 2, 4); q.append(("W", s + 2, 4))
            for m in range(4): ldh(s + 2, m); q.append(("H", s + 2))
            adv()
    A("s_nop 7")
    P.stamp(1)
    A("v_lshlrev_b32 v2, 4, v0")
    G = 88
    def wo_dma(first, cnt, ldsbase):
        A(f"""s_mul_i32 s52, s28, {cnt*5120}
s_add_u32 s53, s52, s42
s_add_u32 s53, s53, {(48 + first)*5120}
s_add_u32 s52, s52, {ldsbase}""")
        for i in range(cnt):
            A("s_mov_b32 m0, s52\ns_nop 0")
            for cb in range(4): A(f"buffer_load_dwordx4 v2, s[32:35], s53 offen offset:{1024*cb} lds")
            A("s_add_u32 m0, s52, 4096\ns_add_u32 s54, s53, 4096")
            A("buffer_load_dwordx4 v2, s[32:35], s54 offen lds")
            A("s_add_u32 s52, s52, 5120\ns_add_u32 s53, s53, 5120")
    def lds_inc(off):
        A(f"""v_mov_b32 v6, {K2_SYNC + off}
v_mov_b32 v7, 1
s_mov_b64 exec, 1
ds_add_u32 v6, v7
s_mov_b64 exec, -1""")
    if FUSE: wo_dma(12, 2, WO2)
    for m in range(4):
        A(f"s_cmp_eq_u32 s28, {m}\ns_cbranch_scc1 L_P3_OWN{m}")
        A(f"""s_sub_u32 s52, s28, {m}
s_and_b32 s52, s52, 3
s_sub_u32 s52, s52, 1
s_mul_i32 s52, s52, 5120
s_add_u32 s52, s52, {RED + m*15360}
v_add_u32 v3, s52, v2""")
        for cb in range(5):
            a = ACC + 4*(m*5 + cb)
            A(f"ds_write_b128 v3, v[{a}:{a+3}] offset:{1024*cb}")
        A(f"s_branch L_P3_NXT{m}")
        A.label(f"L_P3_OWN{m}")
        for r in range(20): A(f"v_mov_b32 v{G+r}, v{ACC + 20*m + r}")
        A.label(f"L_P3_NXT{m}")
    A("s_waitcnt lgkmcnt(0)")
    lds_inc(32)
    lds_spin_ge(A, "L_P3_R1", 7, 6, 4)
    A(f"s_mul_i32 s52, s28, 15360\ns_add_u32 s52, s52, {RED}\nv_add_u32 v3, s52, v2")
    for sl in range(3):
        for cb in range(5):
            a = 8 + 20*sl + 4*cb
            A(f"ds_read_b128 v[{a}:{a+3}], v3 offset:{sl*5120 + 1024*cb}")
    A(f"""s_lshl_b32 s52, s40, 3
s_add_u32 s52, s52, s41
s_lshl_b32 s52, s52, 2
s_add_u32 s52, s52, s28
s_mul_i32 s52, s52, 5120
s_add_u32 s52, s52, {G_OFF}
s_add_u32 s53, s52, 4096
s_waitcnt lgkmcnt(0)""")
    if FUSE:
        lds_inc(36)
        lds_spin_ge(A, "L_P3_R2", 7, 6, 4)
        wo_dma(0, 3, 0)
        srd(A, 48, 4, 5, 2048*1280)
        A(f"""s_lshl_b32 s53, s40, 6
s_lshl_b32 s54, s28, 4
s_add_u32 s53, s53, s54
s_mul_i32 s53, s53, 1280
s_mul_i32 s54, s41, 160
s_add_u32 s47, s53, s54
v_and_b32 v118, 15, v0
v_mul_u32_u24 v118, 1280, v118
v_lshrrev_b32 v119, 4, v0
v_lshl_add_u32 v118, v119, 3, v118""")
        for c in range(5): A(f"buffer_load_dwordx2 v[{108+2*c}:{109+2*c}], v118, s[48:51], s47 offen offset:{32*c}")
    for r in range(20):
        A(f"v_add_f32 v{G+r}, v{G+r}, v{8+r}")
        A(f"v_add_f32 v{28+r}, v{28+r}, v{48+r}")
    for r in range(20): A(f"v_add_f32 v{G+r}, v{G+r}, v{28+r}")
    for r in range(20): A(f"v_mul_f32 v{8+r}, 0xbfb8aa3b, v{G+r}")
    for r in range(20): A(f"v_exp_f32 v{8+r}, v{8+r}")
    for r in range(20): A(f"v_add_f32 v{8+r}, 1.0, v{8+r}")
    for r in range(20): A(f"v_rcp_f32 v{8+r}, v{8+r}")
    for r in range(20): A(f"v_mul_f32 v{G+r}, v{G+r}, v{8+r}")
    if not FUSE:
        for cb in range(4): A(f"buffer_store_dwordx4 v[{G+4*cb}:{G+4*cb+3}], v2, s[32:35], s52 offen offset:{1024*cb} sc1")
        A(f"buffer_store_dwordx4 v[{G+16}:{G+19}], v2, s[32:35], s53 offen sc1")
    P.stamp(2)
    if FUSE:
        A("s_waitcnt vmcnt(0)")
        lds_inc(40)
        if SENT:
            A(f"v_mov_b32 v6, {K2_SYNC + 40}")
            lds_spin_ge(A, "L_P3_R3", 7, 6, 4)
            A(f"v_mov_b32 v6, {K2_SYNC + 48}")
            lds_spin_ge(A, "L_P3_R4", 7, 6, 8)
        else:
            A(f"""s_cmp_eq_u32 s28, 0
    s_cbranch_scc0 L_P3_NOPOLL
    s_lshr_b32 s52, s40, 2
    s_lshl_b32 s52, s52, 8
    s_add_u32 s52, s52, {CNT_OFF}
    v_mov_b32 v3, 0
    s_mov_b32 s55, 0
    L_P3_POLL:
    buffer_load_dword v4, v3, s[32:35], s52 offen sc1
    s_waitcnt vmcnt(0)
    v_cmp_gt_u32 vcc, 32, v4
    s_cbranch_vccz L_P3_POLLD
    s_add_u32 s55, s55, 1
    s_cmp_lt_u32 s55, {GSPIN}
    s_cbranch_scc0 L_P3_POLLD
    s_sleep 4
    s_branch L_P3_POLL
    L_P3_POLLD:""")
            lds_inc(44)
            A.label("L_P3_NOPOLL")
            A(f"v_mov_b32 v6, {K2_SYNC + 44}")
            lds_spin_ge(A, "L_P3_R4", 7, 6, 1)
        P.stamp(3)
        OF = 8; AC = 120; WB = [140, 0]
        A(f"""s_lshl_b32 s52, s40, 2
s_add_u32 s52, s52, s28
s_mul_i32 s52, s52, {O_TS}
s_add_u32 s44, s52, {O_OFF}""")
        A(f"v_add_u32 v3, {WO2}, v2")
        if SENT:
            A("s_mov_b32 s55, 0")
            A.label("L_P3_TRY")
            A("s_mov_b32 s45, s44")
            for s in range(20):
                if s and s % 4 == 0: A("s_add_u32 s45, s45, 4096")
                A(f"buffer_load_dwordx4 v[{OF+4*s}:{OF+4*s+3}], v2, s[32:35], s45 offen offset:{1024*(s % 4)} sc1")
        else:
            for s in range(20):
                if s and s % 4 == 0: A("s_add_u32 s44, s44, 4096")
                A(f"buffer_load_dwordx4 v[{OF+4*s}:{OF+4*s+3}], v2, s[32:35], s44 offen offset:{1024*(s % 4)} sc1")
            A(f"v_mov_b32 v6, {K2_SYNC + 40}")
            lds_spin_ge(A, "L_P3_R3", 7, 6, 4)
        for r in range(AC, AC + 20): A(f"v_mov_b32 v{r}, 0")
        L = Lgk(A)
        NWR = 7
        seq = [(s, cb) for s in range(20) for cb in range(5)]
        def wread(i):
            s, cb = seq[i]; F = 140 + 4*(i % NWR)
            if s < 12: L.issue(f"ds_read_b128 v[{F}:{F+3}], v2 offset:{s*5120 + cb*1024}", i)
            else: L.issue(f"ds_read_b128 v[{F}:{F+3}], v3 offset:{(s-12)*5120 + cb*1024}", i)
        for i in range(NWR - 1): wread(i)
        def chk(s):
            r = OF + 4*s
            A(f"v_max3_u32 v4, v{r}, v{r+1}, v{r+2}")
            A(f"v_max3_u32 v5, v{r+3}, v{r+4}, v{r+5}")
            A(f"v_max3_u32 v4, v4, v{r+6}, v{r+7}")
            A("v_max_u32 v4, v4, v5")
            A("v_cmp_eq_u32 vcc, -1, v4")
            A("s_cbranch_vccnz L_P3_RETRY")
        for i, (s, cb) in enumerate(seq):
            if cb == 0 and not SENT: A(f"s_waitcnt vmcnt({19 - s})")
            if cb == 0 and SENT and s == 0:
                A("s_waitcnt vmcnt(18)"); chk(0)
                P.stamp(4)
            if cb == 2 and SENT and s % 2 == 1 and s + 1 < 20:
                A(f"s_waitcnt vmcnt({18 - (s + 1)})"); chk(s + 1)
            L.need(i)
            F = 140 + 4*(i % NWR)
            A(f"v_mfma_f32_16x16x32_bf16 v[{AC+4*cb}:{AC+4*cb+3}], v[{F}:{F+3}], v[{OF+4*s}:{OF+4*s+3}], v[{AC+4*cb}:{AC+4*cb+3}]")
            if i + NWR - 1 < len(seq): wread(i + NWR - 1)
        if SENT and PROF: A("s_mov_b32 s96, s55")
        P.stamp(5 if SENT else 4)
        srd(A, 48, 18, 19, 2048*1280)
        for c in range(5):
            for k in range(2):
                A(f"v_lshlrev_b32 v{8+4*c+2*k}, 16, v{108+2*c+k}")
                A(f"v_and_b32 v{9+4*c+2*k}, 0xffff0000, v{108+2*c+k}")
        A("s_nop 7")
        for r in range(20): A(f"v_fma_f32 v{8+r}, v{AC+r}, v{G+r}, v{8+r}")
        for c in range(5):
            for k in range(2): A(f"v_cvt_pk_bf16_f32 v{28+2*c+k}, v{8+4*c+2*k}, v{9+4*c+2*k}")
        for c in range(5): A(f"buffer_store_dwordx2 v[{28+2*c}:{29+2*c}], v118, s[48:51], s47 offen offset:{32*c}")
        P.stamp(6 if SENT else 5)
    P.flush(7 if FUSE else 3, vd=56)
    A.label(END)
    A("s_endpgm")
    if FUSE and SENT:
        A.label("L_P3_RETRY")
        A(f"""s_waitcnt vmcnt(0) lgkmcnt(0)
s_add_u32 s55, s55, 1
s_cmp_lt_u32 s55, {GSPIN}
s_cbranch_scc1 L_P3_TRY
s_endpgm""")

def k3(A, P, END="L_K3_END"):
    common_entry(A, P, END)
    A("s_load_dwordx2 s[8:9], s[0:1], 0")
    A(f"""s_and_b32 s52, s2, 7
s_bfe_u32 s53, s2, 0x20003
s_lshl_b32 s53, s53, 3
s_add_u32 s40, s52, s53
s_lshr_b32 s41, s2, 5
s_and_b32 s28, s24, 1
s_lshr_b32 s29, s24, 1
v_lshlrev_b32 v2, 4, v0
s_mul_i32 s42, s41, {WI_NS}
s_mul_i32 s52, s29, {5*5120}
s_add_u32 s42, s42, s52
s_add_u32 s42, s42, {WI_OFF + 48*5120}
s_lshl_b32 s52, s40, 2
s_lshl_b32 s53, s28, 1
s_add_u32 s52, s52, s53
s_mul_i32 s52, s52, {O_TS}
s_mul_i32 s53, s29, 5120
s_add_u32 s52, s52, s53
s_add_u32 s44, s52, {O_OFF}
v_add_u32 v3, 4096, v2
v_add_u32 v4, {O_TS}, v2
v_add_u32 v5, {O_TS + 4096}, v2
s_waitcnt lgkmcnt(0)""")
    srd(A, 32, 22, 23, WS2)
    W = 16; OF = 116; ACC = 156; GR = 196; XR_ = 206
    for s in range(5):
        for m in range(2):
            F = OF + 4*(2*s + m)
            r = (2 + 2*m) if s < 4 else (3 + 2*m)
            A(f"buffer_load_dwordx4 v[{F}:{F+3}], v{r}, s[32:35], s44 offen offset:{1024*(s % 4)}")
        for cb in range(5):
            F = W + 20*s + 4*cb
            if cb < 4: A(f"buffer_load_dwordx4 v[{F}:{F+3}], v2, s[32:35], s42 offen offset:{1024*cb}")
            else: A(f"buffer_load_dwordx4 v[{F}:{F+3}], v3, s[32:35], s42 offen")
        A("s_add_u32 s42, s42, 5120")
    srd(A, 48, 4, 5, 2048*1280)
    A(f"""s_lshr_b32 s30, s24, 1
s_and_b32 s31, s24, 1
s_mul_i32 s31, s31, 3
s_lshl_b32 s52, s40, 3
s_add_u32 s52, s52, s41
s_lshl_b32 s52, s52, 2
s_add_u32 s52, s52, s30
s_mul_i32 s52, s52, 5120
s_lshl_b32 s53, s31, 10
s_add_u32 s52, s52, s53
s_add_u32 s52, s52, {G_OFF}
s_lshl_b32 s53, s40, 6
s_lshl_b32 s54, s30, 4
s_add_u32 s53, s53, s54
s_mul_i32 s53, s53, 1280
s_mul_i32 s54, s41, 160
s_add_u32 s53, s53, s54
s_lshl_b32 s54, s31, 5
s_add_u32 s47, s53, s54
v_and_b32 v6, 15, v0
v_mul_u32_u24 v6, 1280, v6
v_lshrrev_b32 v7, 4, v0
v_lshl_add_u32 v6, v7, 3, v6""")
    for c in range(3):
        A(f"buffer_load_dwordx4 v[{GR+4*c}:{GR+4*c+3}], v2, s[32:35], s52 offen offset:{1024*c}")
        A(f"buffer_load_dwordx2 v[{208+2*c}:{209+2*c}], v6, s[48:51], s47 offen offset:{32*c}")
    for r in range(ACC, ACC + 40): A(f"v_mov_b32 v{r}, 0")
    P.stamp(1)
    for s in range(5):
        A(f"s_waitcnt vmcnt({6 + 7*(4 - s)})")
        for cb in range(5):
            for m in range(2):
                a = ACC + 20*m + 4*cb
                A(f"v_mfma_f32_16x16x32_bf16 v[{a}:{a+3}], v[{W+20*s+4*cb}:{W+20*s+4*cb+3}], v[{OF+4*(2*s+m)}:{OF+4*(2*s+m)+3}], v[{a}:{a+3}]")
    A(f"""s_lshl_b32 s52, s28, 1
s_mul_i32 s52, s52, {4*5120}
s_mul_i32 s53, s29, 5120
s_add_u32 s52, s52, s53
v_add_u32 v3, s52, v2
s_nop 7""")
    P.stamp(2)
    for m in range(2):
        if m: A(f"v_add_u32 v3, {4*5120}, v3")
        for cb in range(5):
            a = ACC + 20*m + 4*cb
            A(f"ds_write_b128 v3, v[{a}:{a+3}] offset:{1024*cb}")
    A(f"""s_waitcnt lgkmcnt(0)
s_barrier
s_mul_i32 s52, s30, {4*5120}
s_lshl_b32 s53, s31, 10
s_add_u32 s52, s52, s53
v_add_u32 v3, s52, v2""")
    for k in range(4):
        for c in range(3):
            a = 16 + 12*k + 4*c
            A(f"ds_read_b128 v[{a}:{a+3}], v3 offset:{k*5120 + 1024*c}")
    srd(A, 48, 18, 19, 2048*1280)
    A("s_waitcnt vmcnt(0)")
    for c in range(3):
        for k in range(2):
            A(f"v_lshlrev_b32 v{64+4*c+2*k}, 16, v{208+2*c+k}")
            A(f"v_and_b32 v{65+4*c+2*k}, 0xffff0000, v{208+2*c+k}")
    A("s_waitcnt lgkmcnt(0)")
    for r in range(12):
        A(f"v_add_f32 v{16+r}, v{16+r}, v{28+r}")
        A(f"v_add_f32 v{40+r}, v{40+r}, v{52+r}")
    for r in range(12): A(f"v_add_f32 v{16+r}, v{16+r}, v{40+r}")
    for r in range(12): A(f"v_fma_f32 v{16+r}, v{16+r}, v{GR+r}, v{64+r}")
    for c in range(3):
        for k in range(2): A(f"v_cvt_pk_bf16_f32 v{80+2*c+k}, v{16+4*c+2*k}, v{17+4*c+2*k}")
    for c in range(2): A(f"buffer_store_dwordx2 v[{80+2*c}:{81+2*c}], v6, s[48:51], s47 offen offset:{32*c}")
    A("s_cmp_eq_u32 s31, 0\ns_cbranch_scc0 L_K3_SK")
    A("buffer_store_dwordx2 v[84:85], v6, s[48:51], s47 offen offset:64")
    A.label("L_K3_SK")
    P.stamp(3)
    P.flush(4, vd=100)
    A.label(END)
    A("s_endpgm")
K3_LDS = 16*5120 + 1024
```

```python
from mlib import *
KA = int(os.environ.get('KA', '44'))
EARLY = int(os.environ.get('EARLY','0')); FCHK = int(os.environ.get('FCHK','0'))
SC = ''
MRG_BASE = 65536; MRG_SZ = 3328
PART = 102400
O0, O1, SX, SY, PP = 16, 32, 48, 64, 8
Q = [(80, 84), (88, 92)]
RING = 96
def slot(i): return RING + 16*(i % 4)
def mfma(d, a, b, c): return f"v_mfma_f32_32x32x16_bf16 v[{d}:{d+15}], v[{a}:{a+3}], v[{b}:{b+3}], " + (c if isinstance(c, str) else f"v[{c}:{c+15}]")

def b_tail_p1(A, P, role):
    A("s_waitcnt vmcnt(0)")
    lds_count(A, f"L_{role}_NOSIGH", S_HCNT, 7, 2, 3, 4)
    A(f"v_mov_b32 v8, {SYNC + S_QSIG}")
    lds_spin_ge(A, f"L_{role}_WQSIG", 9, 8, 1)
    signal(A, 3, 2, 3)
    A("s_waitcnt vmcnt(0)")
    lds_set(A, S_HSIG, 1, 2, 3)
    A.label(f"L_{role}_NOSIGH")

def tile_loads(A, s, adv=True):
    R = slot(s)
    A(f"buffer_load_dwordx4 v[{R}:{R+3}], v2, s[32:35], s44 offen")
    A(f"buffer_load_dwordx2 v[{R+4}:{R+5}], v3, s[32:35], s44 offen")
    A("s_mov_b64 exec, s[46:47]")
    A(f"buffer_load_dwordx4 v[{R+8}:{R+11}], v4, s[32:35], s45 offen")
    A(f"buffer_load_dwordx4 v[{R+12}:{R+15}], v5, s[32:35], s45 offen")
    A("s_mov_b64 exec, -1")
    if adv:
        A("s_add_u32 s44, s44, 512")
        A(f"s_add_u32 s45, s45, {2*VT_GS}")

def attention(A, P):
    A("s_lshr_b32 s49, s24, 2")
    A(f"s_mul_i32 s42, s49, {KA}")
    A(f"s_cmp_eq_u32 s49, 0\ns_cselect_b32 s43, {KA//4}, {(64-KA)//4}")
    P.stamp(1)
    A(f"""s_and_b32 s52, s2, 7
s_lshl_b32 s52, s52, 2
s_bfe_u32 s53, s2, 0x20003
s_add_u32 s40, s52, s53
s_lshr_b32 s41, s2, 5
s_lshr_b32 s52, s40, 1
s_mul_i32 s52, s52, 5
s_and_b32 s53, s40, 1
s_mul_i32 s54, s53, 3
s_add_u32 s54, s54, s52
s_add_u32 s55, s52, 2
s_mul_i32 s54, s54, {QK_OS}
s_mul_i32 s55, s55, {QK_OS}
s_lshl_b32 s56, s53, 3
s_add_u32 s55, s55, s56
s_add_u32 s54, s54, {QK_OFF}
s_add_u32 s55, s55, {QK_OFF}
v_and_b32 v10, 31, v0
v_lshrrev_b32 v11, 5, v0
v_lshlrev_b32 v12, 4, v10
v_lshl_add_u32 v13, v11, 15, v12
v_add_u32 v13, s54, v13
v_add_u32 v14, s55, v12
v_cmp_eq_u32 vcc, 0, v11
v_mov_b32 v15, 0x7ff00000
v_cndmask_b32 v14, v15, v14, vcc
v_add_u32 v2, {80*QK_OS}, v13
v_add_u32 v3, {80*QK_OS}, v14
v_cndmask_b32 v3, v15, v3, vcc
s_lshl_b32 s56, s41, 8
s_lshl_b32 s57, s28, 6
s_add_u32 s56, s56, s57
s_lshl_b32 s57, s49, 5
s_add_u32 s58, s56, s57
s_xor_b32 s57, s57, 32
s_add_u32 s59, s56, s57
s_lshl_b32 s56, s58, 4
s_lshl_b32 s57, s59, 4""")
    A("s_mov_b32 s51, s58")
    A(f"""buffer_load_dwordx4 v[{Q[0][0]}:{Q[0][0]+3}], v13, s[32:35], s56 offen
buffer_load_dwordx2 v[{Q[0][1]}:{Q[0][1]+1}], v14, s[32:35], s56 offen
buffer_load_dwordx4 v[{Q[1][0]}:{Q[1][0]+3}], v13, s[32:35], s57 offen
buffer_load_dwordx2 v[{Q[1][1]}:{Q[1][1]+1}], v14, s[32:35], s57 offen""")
    A(f"""s_mul_i32 s52, s40, 320
s_add_u32 s52, s52, {VT_OFF}
v_mul_u32_u24 v4, 10240, v11
v_add_u32 v4, v4, v12
v_add_u32 v4, s52, v4
v_add_u32 v5, {VT_GS}, v4
s_mov_b32 s46, 0x000fffff
s_mov_b32 s47, 0x000fffff
s_mov_b32 s48, 0""")
    A(f"""v_mov_b32 v12, 0x3f803f80
v_cndmask_b32 v13, 0, v12, vcc
v_lshrrev_b32 v14, 16, v13
v_cmp_eq_u32 vcc, 20, v10
v_cndmask_b32 v12, 0, v12, vcc""")
    for s in range(4):
        R = slot(s)
        A(f"v_mov_b32 v{R+6}, v13\nv_mov_b32 v{R+7}, v14")
        for r in range(8, 16): A(f"v_mov_b32 v{R+r}, v12")
    if EARLY:
        A(f"""s_lshl_b32 s44, s42, 9
s_mul_i32 s45, s42, {2*VT_GS}""")
        for s in range(3): tile_loads(A, s)
        A("s_barrier\ns_branch L_ATT_START2")
    else: A("s_barrier")
    A.label("L_ATT_START")
    A(f"""s_lshl_b32 s44, s42, 9
s_mul_i32 s45, s42, {2*VT_GS}""")
    for s in range(3): tile_loads(A, s)
    A.label("L_ATT_START2")
    for j in range(2):
        A(f"v_mov_b32 v{Q[j][1]+2}, 0\nv_mov_b32 v{Q[j][1]+3}, 0")
    A("s_cmp_eq_u32 s48, 0\ns_cbranch_scc0 L_ATT_HAVEM")
    A("s_waitcnt vmcnt(4)")
    def smax(j, first, dst, srcs):
        regs = [b + r for b in srcs for r in range(16)]
        if first:
            A(f"v_max3_f32 v{dst}, v{regs[0]}, v{regs[1]}, v{regs[2]}"); regs = regs[3:]
        while regs:
            if len(regs) >= 2:
                A(f"v_max3_f32 v{dst}, v{dst}, v{regs[0]}, v{regs[1]}"); regs = regs[2:]
            else:
                A(f"v_max_f32 v{dst}, v{dst}, v{regs[0]}"); regs = regs[1:]
    def xhalf_max(r):
        A(f"""v_mov_b32 v160, v{r}
s_nop 1
v_permlane32_swap_b32 v{r}, v160
s_nop 1
v_max_f32 v{r}, v{r}, v160""")
    for j in range(2):
        for t, B in ((0, SX), (1, SY)):
            A(mfma(B, slot(t), Q[j][0], "0"))
            A(mfma(B, slot(t)+4, Q[j][1], B))
        A("s_nop 7\ns_nop 7")
        smax(j, True, 6+j, [SX, SY])
    for j in range(2):
        xhalf_max(6+j)
        A(f"v_add_f32 v{6+j}, 0x42c00000, v{6+j}")
    A.label("L_ATT_HAVEM")
    A("v_cmp_gt_u32 vcc, 32, v0")
    for j in range(2):
        m = 6 + j; q2 = Q[j][1]
        A(f"""v_sub_f32 v160, 0, v{m}
v_cvt_pk_bf16_f32 v161, v160, v160
v_and_b32 v161, 0xffff0000, v161
v_sub_f32 v162, v160, v161
v_cvt_pk_bf16_f32 v163, v162, v162
v_and_b32 v163, 0xffff0000, v163
v_sub_f32 v164, v162, v163
v_cvt_pk_bf16_f32 v165, v164, v164
v_and_b32 v165, 0xffff0000, v165
v_add_f32 v166, v163, v165
v_add_f32 v166, v161, v166
v_sub_f32 v{m}, 0, v166
v_lshrrev_b32 v161, 16, v161
v_or_b32 v161, v161, v163
v_lshrrev_b32 v165, 16, v165
v_cndmask_b32 v{q2+2}, 0, v161, vcc
v_cndmask_b32 v{q2+3}, 0, v165, vcc""")
    for r in range(O0, O0 + 32): A(f"v_mov_b32 v{r}, 0")
    for r in range(PP, PP + 8): A(f"v_mov_b32 v{r}, 0")
    A("s_waitcnt vmcnt(4)")
    A(mfma(SX, slot(0), Q[0][0], "0"))
    A(mfma(SX, slot(0)+4, Q[0][1], SX))
    A("s_mov_b32 s50, 0\ns_nop 7\ns_nop 3")
    P.stamp(2)
    A.label("L_ATT_LOOP")
    for t in range(4):
        for j in range(2):
            X, Y = (SX, SY) if j == 0 else (SY, SX)
            cur = slot(t); nxt = slot(t + 1) if j == 1 else cur
            qn = Q[1 - j]
            Ocur = (O0, O1)[j]; Oprev = (O0, O1)[1 - j]
            vprev = slot(t - 1) if j == 0 else cur
            if j == 1: A("s_waitcnt vmcnt(8)")
            A(mfma(Y, nxt, qn[0], "0"))
            for e in range(0, 6): A(f"v_exp_f32 v{X+e}, v{X+e}")
            A(mfma(Oprev, vprev + 12, PP + 4, Oprev))
            for e in range(6, 8): A(f"v_exp_f32 v{X+e}, v{X+e}")
            if j == 0: tile_loads(A, t + 3)
            for e in range(4): A(f"v_cvt_pk_bf16_f32 v{PP+e}, v{X+2*e}, v{X+2*e+1}")
            A(mfma(Y, nxt + 4, qn[1], Y))
            for e in range(8, 14): A(f"v_exp_f32 v{X+e}, v{X+e}")
            A(mfma(Ocur, cur + 8, PP, Ocur))
            for e in range(14, 16): A(f"v_exp_f32 v{X+e}, v{X+e}")
            for e in range(4, 8): A(f"v_cvt_pk_bf16_f32 v{PP+e}, v{X+2*e}, v{X+2*e+1}")
    A("""s_add_u32 s50, s50, 1
s_cmp_lt_u32 s50, s43
s_cbranch_scc1 L_ATT_LOOP
s_nop 1""")
    A(mfma(O1, slot(3) + 12, PP + 4, O1))
    A("s_nop 7\ns_nop 7")
    P.stamp(3)
    A("s_mov_b64 s[52:53], 0")
    A("v_mov_b32 v161, 0x207")
    for j, O in enumerate((O0, O1)):
        if FCHK:
            A(f"v_mul_f32 v{164+2*j}, 0, v{O}\nv_mul_f32 v{165+2*j}, 0, v{O+1}")
            for r in range(2, 12): A(f"v_fma_f32 v{164+2*j+r%2}, 0, v{O+r}, v{164+2*j+r%2}")
            A(f"v_add_f32 v{164+2*j}, v{164+2*j}, v{165+2*j}\ns_nop 0")
            A(f"v_cmp_class_f32 vcc, v{164+2*j}, v161")
            A("s_or_b64 s[52:53], s[52:53], vcc")
        else:
          for r in range(12):
            A(f"v_cmp_class_f32 vcc, v{O+r}, v161")
            A("s_or_b64 s[52:53], s[52:53], vcc")
        A(f"""v_mov_b32 v160, v{O+8}
v_mov_b32 v{162+j}, v{O+8}
s_nop 1
v_permlane32_swap_b32 v160, v{162+j}
s_nop 1
v_cmp_lt_f32 vcc, 0x71800000, v{162+j}
s_or_b64 s[52:53], s[52:53], vcc""")
    A("""s_cmp_eq_u64 s[52:53], 0
s_cbranch_scc1 L_ATT_OK
s_cmp_eq_u32 s48, 0
s_cbranch_scc0 L_ATT_OK""")
    A("s_waitcnt vmcnt(0)")
    A(f"s_mov_b32 s48, 1\ns_lshl_b32 s44, s42, 9\ns_lshl_b32 s50, s43, 2")
    for j in range(2):
        A(f"v_mov_b32 v{Q[j][1]+2}, 0\nv_mov_b32 v{Q[j][1]+3}, 0\nv_mov_b32 v{6+j}, 0xff800000")
    A.label("L_ATT_MAXL")
    R = slot(0)
    A(f"buffer_load_dwordx4 v[{R}:{R+3}], v2, s[32:35], s44 offen")
    A(f"buffer_load_dwordx2 v[{R+4}:{R+5}], v3, s[32:35], s44 offen")
    A("s_waitcnt vmcnt(0)")
    for j, B in ((0, SX), (1, SY)):
        A(mfma(B, R, Q[j][0], "0"))
        A(mfma(B, R+4, Q[j][1], B))
    A("s_nop 7\ns_nop 7")
    smax(0, False, 6, [SX]); smax(1, False, 7, [SY])
    A("""s_add_u32 s44, s44, 512
s_sub_u32 s50, s50, 1
s_cmp_eq_u32 s50, 0
s_cbranch_scc0 L_ATT_MAXL""")
    for j in range(2): xhalf_max(6+j)
    A("s_branch L_ATT_START")
    A.label("L_ATT_OK")
    for j, O in enumerate((O0, O1)):
        A(f"v_rcp_f32 v160, v{162+j}\nv_log_f32 v161, v{162+j}\ns_nop 0")
        for r in range(12): A(f"v_mul_f32 v{O+r}, v160, v{O+r}")
        A(f"v_add_f32 v{6+j}, v161, v{6+j}")
    A(f"""s_lshl_b32 s52, s49, 2
s_add_u32 s52, s52, s28
s_mul_i32 s53, s52, {MRG_SZ}
s_add_u32 s53, s53, {MRG_BASE}
s_xor_b32 s52, s52, 4
s_mul_i32 s54, s52, {MRG_SZ}
s_add_u32 s54, s54, {MRG_BASE}
v_lshlrev_b32 v10, 4, v0
v_lshlrev_b32 v11, 2, v0
v_add_u32 v12, s53, v10
v_add_u32 v13, s53, v11""")
    for i in range(3): A(f"ds_write_b128 v12, v[{O1+4*i}:{O1+4*i+3}] offset:{1024*i}")
    A("ds_write_b32 v13, v7 offset:3072")
    A("s_waitcnt lgkmcnt(0)")
    A(f"""s_lshl_b32 s52, s28, 2
s_add_u32 s52, s52, {65536 + 8*3328}
v_mov_b32 v8, s52
v_mov_b32 v9, 1
s_mov_b64 exec, 1
ds_add_u32 v8, v9
s_mov_b64 exec, -1""")
    lds_spin_ge(A, "L_ATT_WM", 9, 8, 2)
    A(f"""v_add_u32 v12, s54, v10
v_add_u32 v13, s54, v11""")
    for i in range(3): A(f"ds_read_b128 v[{O1+4*i}:{O1+4*i+3}], v12 offset:{1024*i}")
    A("ds_read_b32 v7, v13 offset:3072")
    A("""s_waitcnt lgkmcnt(0)
v_max_f32 v160, v6, v7
v_sub_f32 v161, v6, v160
v_sub_f32 v162, v7, v160
v_exp_f32 v161, v161
v_exp_f32 v162, v162
s_nop 0
v_add_f32 v163, v161, v162
v_rcp_f32 v163, v163
s_nop 0
v_mul_f32 v161, v161, v163
v_mul_f32 v162, v162, v163""")
    for r in range(12):
        A(f"v_mul_f32 v{O0+r}, v161, v{O0+r}")
        A(f"v_fma_f32 v{O0+r}, v162, v{O1+r}, v{O0+r}")
    for e in range(6): A(f"v_cvt_pk_bf16_f32 v{48+e}, v{O0+2*e}, v{O0+2*e+1}")
    A(f"""s_lshr_b32 s52, s51, 4
s_mul_i32 s52, s52, {O_TS}
s_lshr_b32 s53, s40, 1
s_mul_i32 s53, s53, 5
s_and_b32 s54, s40, 1
s_mul_i32 s55, s54, 3
s_add_u32 s55, s55, s53
s_lshl_b32 s55, s55, 8
s_add_u32 s55, s55, s52
s_add_u32 s55, s55, {O_OFF}
s_add_u32 s53, s53, 2
s_lshl_b32 s53, s53, 8
s_lshl_b32 s54, s54, 3
s_add_u32 s53, s53, s54
s_add_u32 s53, s53, s52
s_add_u32 s53, s53, {O_OFF}
v_bfe_u32 v10, v0, 4, 1
v_mul_u32_u24 v10, {O_TS}, v10
v_and_b32 v11, 15, v0
v_lshl_add_u32 v10, v11, 4, v10
v_lshrrev_b32 v11, 5, v0
v_lshl_add_u32 v11, v11, 8, v10
buffer_store_dwordx4 v[48:51], v11, s[32:35], s55 offen sc1
s_mov_b32 exec_hi, 0
buffer_store_dwordx2 v[52:53], v10, s[32:35], s53 offen sc1
s_mov_b64 exec, -1""")
    P.stamp(4)
```

```python
from mlib import *
import attn
G_OFF = WI_OFF + 8*WI_NS
G_SZ = 256*4*5120
WS2 = G_OFF + G_SZ
RED = 0
FUSE = int(os.environ.get('FUSE','1'))
K2_LDS = 65536 + 8*3328 + 256 + (8*5120 if FUSE else 0)
WO2 = 65536 + 8*3328 + 256
GSPIN = 8192
PRETRY = int(os.environ.get('PRETRY','0'))
SENT = int(os.environ.get('SENT','1'))
K2_SYNC = 65536 + 8*3328
def common_entry(A, P, end, nwaves_note=""):
    A(f"s_cmp_ge_u32 s2, 256\ns_cbranch_scc1 {end}")
    P.stamp(0)
    A("""s_load_dwordx4 s[4:7], s[0:1], 0
s_load_dwordx4 s[16:19], s[0:1], 48
s_load_dwordx4 s[20:23], s[0:1], 64
v_lshrrev_b32 v1, 6, v0
v_and_b32 v0, 63, v0
s_nop 0
v_readfirstlane_b32 s24, v1""")

def k2(A, P, END="L_K2_END"):
    import mlib
    common_entry(A, P, END)
    A(f"""v_lshlrev_b32 v2, 2, v0
v_add_u32 v2, {K2_SYNC}, v2
v_mov_b32 v3, 0
ds_write_b32 v2, v3
s_and_b32 s28, s24, 3
s_waitcnt lgkmcnt(0)""")
    srd(A, 32, 22, 23, WS2)
    A("s_cmp_lt_u32 s24, 8\ns_cbranch_scc0 L_K2_P")
    attn.attention(A, P)
    if FUSE and SENT:
        A(f"""v_mov_b32 v8, {K2_SYNC + 48}
v_mov_b32 v9, 1
s_mov_b64 exec, 1
ds_add_u32 v8, v9
s_mov_b64 exec, -1""")
    elif FUSE:
        A(f"""s_waitcnt vmcnt(0)
v_mov_b32 v8, {K2_SYNC + 48}
v_mov_b32 v9, 1
s_mov_b64 exec, 1
ds_add_rtn_u32 v10, v8, v9
s_waitcnt lgkmcnt(0)
v_readfirstlane_b32 s52, v10
s_cmp_eq_u32 s52, 7
s_cbranch_scc0 L_K2_NOSIG
s_lshl_b32 s52, s41, 8
s_add_u32 s52, s52, {CNT_OFF}
v_mov_b32 v8, 0
buffer_atomic_add v9, v8, s[32:35], s52 offen sc1
L_K2_NOSIG:
s_mov_b64 exec, -1""")
    P.flush(5, vd=56)
    A("s_endpgm")
    A.label("L_K2_P")
    A("s_barrier")
    if int(os.environ.get('P2PRIO','0')): A(f"s_setprio {os.environ['P2PRIO']}")
    ACC = 8; SET = [88, 124]
    A(f"""s_and_b32 s52, s2, 7
s_bfe_u32 s53, s2, 0x20003
s_lshl_b32 s53, s53, 3
s_add_u32 s40, s52, s53
s_lshr_b32 s41, s2, 5
s_mul_i32 s42, s41, {WI_NS}
s_add_u32 s42, s42, {WI_OFF}
s_mul_i32 s52, s28, {12*5120}
s_add_u32 s44, s42, s52
s_add_u32 s45, s44, 4096
s_mul_i32 s46, s40, {4*H_TS}
s_mul_i32 s52, s28, {12*1024}
s_add_u32 s46, s46, s52
s_add_u32 s46, s46, {H_OFF}
v_lshlrev_b32 v2, 4, v0""")
    for m in range(1, 4): A(f"v_add_u32 v{2+m}, {m*H_TS}, v2")
    def ldw(s, cb):
        F = SET[s % 2] + 4*cb
        if cb < 4: A(f"buffer_load_dwordx4 v[{F}:{F+3}], v2, s[32:35], s44 offen offset:{1024*cb}")
        else: A(f"buffer_load_dwordx4 v[{F}:{F+3}], v2, s[32:35], s45 offen")
    def ldh(s, m):
        F = SET[s % 2] + 20 + 4*m
        A(f"buffer_load_dwordx4 v[{F}:{F+3}], v{2+m}, s[32:35], s46 offen")
    def adv():
        A("s_add_u32 s44, s44, 5120\ns_add_u32 s45, s45, 5120\ns_add_u32 s46, s46, 1024")
    q = []
    for s in range(2):
        for m in range(4): ldh(s, m); q.append(("H", s))
        for cb in range(5): ldw(s, cb); q.append(("W", s, cb))
        adv()
    for r in range(ACC, ACC + 80): A(f"v_mov_b32 v{r}, 0")
    def need(*tags):
        last = max(i for i, t in enumerate(q) if t in tags)
        A(f"s_waitcnt vmcnt({len(q) - 1 - last})")
    for s in range(12):
        F = SET[s % 2]
        for cb in range(5):
            need(("H", s), ("W", s, cb))
            for m in range(4):
                a = ACC + 4*(m*5 + cb)
                A(f"v_mfma_f32_16x16x32_bf16 v[{a}:{a+3}], v[{F+4*cb}:{F+4*cb+3}], v[{F+20+4*m}:{F+23+4*m}], v[{a}:{a+3}]")
            if s + 2 < 12 and cb > 0:
                ldw(s + 2, cb - 1); q.append(("W", s + 2, cb - 1))
        if s + 2 < 12:
            ldw(s + 2, 4); q.append(("W", s + 2, 4))
            for m in range(4): ldh(s + 2, m); q.append(("H", s + 2))
            adv()
    A("s_nop 7")
    P.stamp(1)
    A("v_lshlrev_b32 v2, 4, v0")
    G = 88
    def wo_dma(first, cnt, ldsbase):
        A(f"""s_mul_i32 s52, s28, {cnt*5120}
s_add_u32 s53, s52, s42
s_add_u32 s53, s53, {(48 + first)*5120}
s_add_u32 s52, s52, {ldsbase}""")
        for i in range(cnt):
            A("s_mov_b32 m0, s52\ns_nop 0")
            for cb in range(4): A(f"buffer_load_dwordx4 v2, s[32:35], s53 offen offset:{1024*cb} lds")
            A("s_add_u32 m0, s52, 4096\ns_add_u32 s54, s53, 4096")
            A("buffer_load_dwordx4 v2, s[32:35], s54 offen lds")
            A("s_add_u32 s52, s52, 5120\ns_add_u32 s53, s53, 5120")
    def lds_inc(off):
        A(f"""v_mov_b32 v6, {K2_SYNC + off}
v_mov_b32 v7, 1
s_mov_b64 exec, 1
ds_add_u32 v6, v7
s_mov_b64 exec, -1""")
    if FUSE: wo_dma(12, 2, WO2)
    for m in range(4):
        A(f"s_cmp_eq_u32 s28, {m}\ns_cbranch_scc1 L_P3_OWN{m}")
        A(f"""s_sub_u32 s52, s28, {m}
s_and_b32 s52, s52, 3
s_sub_u32 s52, s52, 1
s_mul_i32 s52, s52, 5120
s_add_u32 s52, s52, {RED + m*15360}
v_add_u32 v3, s52, v2""")
        for cb in range(5):
            a = ACC + 4*(m*5 + cb)
            A(f"ds_write_b128 v3, v[{a}:{a+3}] offset:{1024*cb}")
        A(f"s_branch L_P3_NXT{m}")
        A.label(f"L_P3_OWN{m}")
        for r in range(20): A(f"v_mov_b32 v{G+r}, v{ACC + 20*m + r}")
        A.label(f"L_P3_NXT{m}")
    A("s_waitcnt lgkmcnt(0)")
    lds_inc(32)
    lds_spin_ge(A, "L_P3_R1", 7, 6, 4)
    A(f"s_mul_i32 s52, s28, 15360\ns_add_u32 s52, s52, {RED}\nv_add_u32 v3, s52, v2")
    for sl in range(3):
        for cb in range(5):
            a = 8 + 20*sl + 4*cb
            A(f"ds_read_b128 v[{a}:{a+3}], v3 offset:{sl*5120 + 1024*cb}")
    A(f"""s_lshl_b32 s52, s40, 3
s_add_u32 s52, s52, s41
s_lshl_b32 s52, s52, 2
s_add_u32 s52, s52, s28
s_mul_i32 s52, s52, 5120
s_add_u32 s52, s52, {G_OFF}
s_add_u32 s53, s52, 4096
s_waitcnt lgkmcnt(0)""")
    if FUSE:
        lds_inc(36)
        lds_spin_ge(A, "L_P3_R2", 7, 6, 4)
        wo_dma(0, 3, 0)
        srd(A, 48, 4, 5, 2048*1280)
        A(f"""s_lshl_b32 s53, s40, 6
s_lshl_b32 s54, s28, 4
s_add_u32 s53, s53, s54
s_mul_i32 s53, s53, 1280
s_mul_i32 s54, s41, 160
s_add_u32 s47, s53, s54
v_and_b32 v118, 15, v0
v_mul_u32_u24 v118, 1280, v118
v_lshrrev_b32 v119, 4, v0
v_lshl_add_u32 v118, v119, 3, v118""")
        for c in range(5): A(f"buffer_load_dwordx2 v[{108+2*c}:{109+2*c}], v118, s[48:51], s47 offen offset:{32*c}")
    for r in range(20):
        A(f"v_add_f32 v{G+r}, v{G+r}, v{8+r}")
        A(f"v_add_f32 v{28+r}, v{28+r}, v{48+r}")
    for r in range(20): A(f"v_add_f32 v{G+r}, v{G+r}, v{28+r}")
    for r in range(20): A(f"v_mul_f32 v{8+r}, 0xbfb8aa3b, v{G+r}")
    for r in range(20): A(f"v_exp_f32 v{8+r}, v{8+r}")
    for r in range(20): A(f"v_add_f32 v{8+r}, 1.0, v{8+r}")
    for r in range(20): A(f"v_rcp_f32 v{8+r}, v{8+r}")
    for r in range(20): A(f"v_mul_f32 v{G+r}, v{G+r}, v{8+r}")
    if not FUSE:
        for cb in range(4): A(f"buffer_store_dwordx4 v[{G+4*cb}:{G+4*cb+3}], v2, s[32:35], s52 offen offset:{1024*cb} sc1")
        A(f"buffer_store_dwordx4 v[{G+16}:{G+19}], v2, s[32:35], s53 offen sc1")
    P.stamp(2)
    if FUSE:
        A("s_waitcnt vmcnt(0)")
        lds_inc(40)
        if SENT:
            A(f"v_mov_b32 v6, {K2_SYNC + 40}")
            lds_spin_ge(A, "L_P3_R3", 7, 6, 4)
            A(f"v_mov_b32 v6, {K2_SYNC + 48}")
            lds_spin_ge(A, "L_P3_R4", 7, 6, 8)
        else:
            A(f"""s_cmp_eq_u32 s28, 0
    s_cbranch_scc0 L_P3_NOPOLL
    s_lshr_b32 s52, s40, 2
    s_lshl_b32 s52, s52, 8
    s_add_u32 s52, s52, {CNT_OFF}
    v_mov_b32 v3, 0
    s_mov_b32 s55, 0
    L_P3_POLL:
    buffer_load_dword v4, v3, s[32:35], s52 offen sc1
    s_waitcnt vmcnt(0)
    v_cmp_gt_u32 vcc, 32, v4
    s_cbranch_vccz L_P3_POLLD
    s_add_u32 s55, s55, 1
    s_cmp_lt_u32 s55, {GSPIN}
    s_cbranch_scc0 L_P3_POLLD
    s_sleep 4
    s_branch L_P3_POLL
    L_P3_POLLD:""")
            lds_inc(44)
            A.label("L_P3_NOPOLL")
            A(f"v_mov_b32 v6, {K2_SYNC + 44}")
            lds_spin_ge(A, "L_P3_R4", 7, 6, 1)
        P.stamp(3)
        OF = 8; AC = 120; WB = [140, 0]
        A(f"""s_lshl_b32 s52, s40, 2
s_add_u32 s52, s52, s28
s_mul_i32 s52, s52, {O_TS}
s_add_u32 s44, s52, {O_OFF}""")
        A(f"v_add_u32 v3, {WO2}, v2")
        if SENT:
            A("s_mov_b32 s55, 0")
            A.label("L_P3_TRY")
            A("s_mov_b32 s45, s44")
            for s in range(20):
                if s and s % 4 == 0: A("s_add_u32 s45, s45, 4096")
                A(f"buffer_load_dwordx4 v[{OF+4*s}:{OF+4*s+3}], v2, s[32:35], s45 offen offset:{1024*(s % 4)} sc1")
        else:
            for s in range(20):
                if s and s % 4 == 0: A("s_add_u32 s44, s44, 4096")
                A(f"buffer_load_dwordx4 v[{OF+4*s}:{OF+4*s+3}], v2, s[32:35], s44 offen offset:{1024*(s % 4)} sc1")
            A(f"v_mov_b32 v6, {K2_SYNC + 40}")
            lds_spin_ge(A, "L_P3_R3", 7, 6, 4)
        for r in range(AC, AC + 20): A(f"v_mov_b32 v{r}, 0")
        L = Lgk(A)
        NWR = 7
        seq = [(s, cb) for s in range(20) for cb in range(5)]
        def wread(i):
            s, cb = seq[i]; F = 140 + 4*(i % NWR)
            if s < 12: L.issue(f"ds_read_b128 v[{F}:{F+3}], v2 offset:{s*5120 + cb*1024}", i)
            else: L.issue(f"ds_read_b128 v[{F}:{F+3}], v3 offset:{(s-12)*5120 + cb*1024}", i)
        for i in range(NWR - 1): wread(i)
        def chk(s):
            r = OF + 4*s
            A(f"v_max3_u32 v4, v{r}, v{r+1}, v{r+2}")
            A(f"v_max3_u32 v5, v{r+3}, v{r+4}, v{r+5}")
            A(f"v_max3_u32 v4, v4, v{r+6}, v{r+7}")
            A("v_max_u32 v4, v4, v5")
            A("v_cmp_eq_u32 vcc, -1, v4")
            A(f"s_cbranch_vccnz L_P3_RETRY{s//2 if PRETRY else ''}")
        for i, (s, cb) in enumerate(seq):
            if cb == 0 and not SENT: A(f"s_waitcnt vmcnt({19 - s})")
            if cb == 0 and SENT and s == 0:
                A.label("L_P3_CHK0"); A("s_waitcnt vmcnt(18)"); chk(0)
                P.stamp(4)
            if cb == 2 and SENT and s % 2 == 1 and s + 1 < 20:
                A.label(f"L_P3_CHK{(s+1)//2}"); A(f"s_waitcnt vmcnt({18 - (s + 1)})"); chk(s + 1)
            L.need(i)
            F = 140 + 4*(i % NWR)
            A(f"v_mfma_f32_16x16x32_bf16 v[{AC+4*cb}:{AC+4*cb+3}], v[{F}:{F+3}], v[{OF+4*s}:{OF+4*s+3}], v[{AC+4*cb}:{AC+4*cb+3}]")
            if i + NWR - 1 < len(seq): wread(i + NWR - 1)
        if SENT and PROF: A("s_mov_b32 s96, s55")
        P.stamp(5 if SENT else 4)
        srd(A, 48, 18, 19, 2048*1280)
        for c in range(5):
            for k in range(2):
                A(f"v_lshlrev_b32 v{8+4*c+2*k}, 16, v{108+2*c+k}")
                A(f"v_and_b32 v{9+4*c+2*k}, 0xffff0000, v{108+2*c+k}")
        A("s_nop 7")
        for r in range(20): A(f"v_fma_f32 v{8+r}, v{AC+r}, v{G+r}, v{8+r}")
        for c in range(5):
            for k in range(2): A(f"v_cvt_pk_bf16_f32 v{28+2*c+k}, v{8+4*c+2*k}, v{9+4*c+2*k}")
        for c in range(5): A(f"buffer_store_dwordx2 v[{28+2*c}:{29+2*c}], v118, s[48:51], s47 offen offset:{32*c}")
        P.stamp(6 if SENT else 5)
    P.flush(7 if FUSE else 3, vd=56)
    A.label(END)
    A("s_endpgm")
    if FUSE and SENT and PRETRY:
        for p in range(10):
            A.label(f"L_P3_RETRY{p}")
            A(f"""s_add_u32 s55, s55, 1
s_cmp_lt_u32 s55, {GSPIN}
s_cbranch_scc0 L_P3_GIVEUP
s_add_u32 s45, s44, {4096*((2*p)//4)}""")
            for f in range(2*p, 20):
                if f > 2*p and f % 4 == 0: A("s_add_u32 s45, s45, 4096")
                A(f"buffer_load_dwordx4 v[{8+4*f}:{8+4*f+3}], v2, s[32:35], s45 offen offset:{1024*(f % 4)} sc1")
            A(f"s_branch L_P3_CHK{p}")
        A.label("L_P3_GIVEUP")
        A("s_endpgm")
    elif FUSE and SENT:
        A.label("L_P3_RETRY")
        A(f"""s_waitcnt vmcnt(0) lgkmcnt(0)
s_add_u32 s55, s55, 1
s_cmp_lt_u32 s55, {GSPIN}
s_cbranch_scc1 L_P3_TRY
s_endpgm""")

def k3(A, P, END="L_K3_END"):
    common_entry(A, P, END)
    A("s_load_dwordx2 s[8:9], s[0:1], 0")
    A(f"""s_and_b32 s52, s2, 7
s_bfe_u32 s53, s2, 0x20003
s_lshl_b32 s53, s53, 3
s_add_u32 s40, s52, s53
s_lshr_b32 s41, s2, 5
s_and_b32 s28, s24, 1
s_lshr_b32 s29, s24, 1
v_lshlrev_b32 v2, 4, v0
s_mul_i32 s42, s41, {WI_NS}
s_mul_i32 s52, s29, {5*5120}
s_add_u32 s42, s42, s52
s_add_u32 s42, s42, {WI_OFF + 48*5120}
s_lshl_b32 s52, s40, 2
s_lshl_b32 s53, s28, 1
s_add_u32 s52, s52, s53
s_mul_i32 s52, s52, {O_TS}
s_mul_i32 s53, s29, 5120
s_add_u32 s52, s52, s53
s_add_u32 s44, s52, {O_OFF}
v_add_u32 v3, 4096, v2
v_add_u32 v4, {O_TS}, v2
v_add_u32 v5, {O_TS + 4096}, v2
s_waitcnt lgkmcnt(0)""")
    srd(A, 32, 22, 23, WS2)
    W = 16; OF = 116; ACC = 156; GR = 196; XR_ = 206
    for s in range(5):
        for m in range(2):
            F = OF + 4*(2*s + m)
            r = (2 + 2*m) if s < 4 else (3 + 2*m)
            A(f"buffer_load_dwordx4 v[{F}:{F+3}], v{r}, s[32:35], s44 offen offset:{1024*(s % 4)}")
        for cb in range(5):
            F = W + 20*s + 4*cb
            if cb < 4: A(f"buffer_load_dwordx4 v[{F}:{F+3}], v2, s[32:35], s42 offen offset:{1024*cb}")
            else: A(f"buffer_load_dwordx4 v[{F}:{F+3}], v3, s[32:35], s42 offen")
        A("s_add_u32 s42, s42, 5120")
    srd(A, 48, 4, 5, 2048*1280)
    A(f"""s_lshr_b32 s30, s24, 1
s_and_b32 s31, s24, 1
s_mul_i32 s31, s31, 3
s_lshl_b32 s52, s40, 3
s_add_u32 s52, s52, s41
s_lshl_b32 s52, s52, 2
s_add_u32 s52, s52, s30
s_mul_i32 s52, s52, 5120
s_lshl_b32 s53, s31, 10
s_add_u32 s52, s52, s53
s_add_u32 s52, s52, {G_OFF}
s_lshl_b32 s53, s40, 6
s_lshl_b32 s54, s30, 4
s_add_u32 s53, s53, s54
s_mul_i32 s53, s53, 1280
s_mul_i32 s54, s41, 160
s_add_u32 s53, s53, s54
s_lshl_b32 s54, s31, 5
s_add_u32 s47, s53, s54
v_and_b32 v6, 15, v0
v_mul_u32_u24 v6, 1280, v6
v_lshrrev_b32 v7, 4, v0
v_lshl_add_u32 v6, v7, 3, v6""")
    for c in range(3):
        A(f"buffer_load_dwordx4 v[{GR+4*c}:{GR+4*c+3}], v2, s[32:35], s52 offen offset:{1024*c}")
        A(f"buffer_load_dwordx2 v[{208+2*c}:{209+2*c}], v6, s[48:51], s47 offen offset:{32*c}")
    for r in range(ACC, ACC + 40): A(f"v_mov_b32 v{r}, 0")
    P.stamp(1)
    for s in range(5):
        A(f"s_waitcnt vmcnt({6 + 7*(4 - s)})")
        for cb in range(5):
            for m in range(2):
                a = ACC + 20*m + 4*cb
                A(f"v_mfma_f32_16x16x32_bf16 v[{a}:{a+3}], v[{W+20*s+4*cb}:{W+20*s+4*cb+3}], v[{OF+4*(2*s+m)}:{OF+4*(2*s+m)+3}], v[{a}:{a+3}]")
    A(f"""s_lshl_b32 s52, s28, 1
s_mul_i32 s52, s52, {4*5120}
s_mul_i32 s53, s29, 5120
s_add_u32 s52, s52, s53
v_add_u32 v3, s52, v2
s_nop 7""")
    P.stamp(2)
    for m in range(2):
        if m: A(f"v_add_u32 v3, {4*5120}, v3")
        for cb in range(5):
            a = ACC + 20*m + 4*cb
            A(f"ds_write_b128 v3, v[{a}:{a+3}] offset:{1024*cb}")
    A(f"""s_waitcnt lgkmcnt(0)
s_barrier
s_mul_i32 s52, s30, {4*5120}
s_lshl_b32 s53, s31, 10
s_add_u32 s52, s52, s53
v_add_u32 v3, s52, v2""")
    for k in range(4):
        for c in range(3):
            a = 16 + 12*k + 4*c
            A(f"ds_read_b128 v[{a}:{a+3}], v3 offset:{k*5120 + 1024*c}")
    srd(A, 48, 18, 19, 2048*1280)
    A("s_waitcnt vmcnt(0)")
    for c in range(3):
        for k in range(2):
            A(f"v_lshlrev_b32 v{64+4*c+2*k}, 16, v{208+2*c+k}")
            A(f"v_and_b32 v{65+4*c+2*k}, 0xffff0000, v{208+2*c+k}")
    A("s_waitcnt lgkmcnt(0)")
    for r in range(12):
        A(f"v_add_f32 v{16+r}, v{16+r}, v{28+r}")
        A(f"v_add_f32 v{40+r}, v{40+r}, v{52+r}")
    for r in range(12): A(f"v_add_f32 v{16+r}, v{16+r}, v{40+r}")
    for r in range(12): A(f"v_fma_f32 v{16+r}, v{16+r}, v{GR+r}, v{64+r}")
    for c in range(3):
        for k in range(2): A(f"v_cvt_pk_bf16_f32 v{80+2*c+k}, v{16+4*c+2*k}, v{17+4*c+2*k}")
    for c in range(2): A(f"buffer_store_dwordx2 v[{80+2*c}:{81+2*c}], v6, s[48:51], s47 offen offset:{32*c}")
    A("s_cmp_eq_u32 s31, 0\ns_cbranch_scc0 L_K3_SK")
    A("buffer_store_dwordx2 v[84:85], v6, s[48:51], s47 offen offset:64")
    A.label("L_K3_SK")
    P.stamp(3)
    P.flush(4, vd=100)
    A.label(END)
    A("s_endpgm")
K3_LDS = 16*5120 + 1024
```
